```python
import torch

def _softmax(x, axis=-1):
    return torch.softmax(x, dim=axis)
def _gelu(x):
    return torch.nn.functional.gelu(x, approximate="tanh")
def _silu(x):
    return torch.nn.functional.silu(x)
def _sigmoid(x):
    return torch.sigmoid(x)
def _layernorm(x, axis=-1, eps=1e-5):
    m = x.mean(dim=axis, keepdim=True)
    v = x.var(dim=axis, keepdim=True, unbiased=False)
    return (x - m) / torch.sqrt(v + eps)
def _scatter_add(tgt, idx, src, axis=0):
    return tgt.clone().index_add_(axis, idx, src)
def _segment_sum(src, seg, n):
    out = torch.zeros((n,) + src.shape[1:], dtype=src.dtype)
    return out.index_add_(0, seg, src)
def _pad(x, pw):
    flat = tuple(v for pair in reversed(pw) for v in pair)
    return torch.nn.functional.pad(x, flat)

kernel_name = 'sequential_preLN__linear_kernel_hedgehog__glu_gated_geglu__prompt'

def setup_inputs():

    _w = (lambda a: (lambda t: t.to(torch.bfloat16) if t.is_floating_point() else t)(torch.as_tensor(a)))
    def _A_setup():
        B, S, D, H = 1, 2048, 448, 16
        Dh = D // H
        return {
            "x": _w((lambda *s: torch.randn(*s, dtype=torch.bfloat16) * 0.05)(B, S, D)),
            "wqkv": _w((lambda *s: torch.randn(*s, dtype=torch.bfloat16) * 0.2)(D, 3 * D)),
            "w_phi": _w((lambda *s: torch.randn(*s, dtype=torch.bfloat16) * 0.2)(H, Dh, Dh) * (Dh ** -0.5)),
            "wo": _w((lambda *s: torch.randn(*s, dtype=torch.bfloat16) * 0.05)(D, D)),
        }
    _A_in = _A_setup()

    def _B_setup():
        B, S, Dm, Df = 1, 2048, 448, 1792
        return {
            "x": _w((lambda *s: torch.randn(*s, dtype=torch.bfloat16) * 0.05)(B, S, Dm)),
            "w_gate": _w((lambda *s: torch.randn(*s, dtype=torch.bfloat16) * 0.4)(Dm, Df) * (Dm ** -0.5)),
            "w_up": _w((lambda *s: torch.randn(*s, dtype=torch.bfloat16) * 0.4)(Dm, Df) * (Dm ** -0.5)),
            "w_down": _w((lambda *s: torch.randn(*s, dtype=torch.bfloat16) * 0.4)(Df, Dm) * (Df ** -0.5)),
        }
    _B_in = _B_setup()

    return {
        "A_x": _A_in["x"],
        "A_wqkv": _A_in["wqkv"],
        "A_w_phi": _A_in["w_phi"],
        "A_wo": _A_in["wo"],
        "B_x": _B_in["x"],
        "B_w_gate": _B_in["w_gate"],
        "B_w_up": _B_in["w_up"],
        "B_w_down": _B_in["w_down"],
    }

def reference(A_x, A_wqkv, A_w_phi, A_wo, B_x, B_w_gate, B_w_up, B_w_down):
    def _A_ref(x, wqkv, w_phi, wo):
        B, S, D = x.shape
        H = 16; Dh = D // H
        qkv = (lambda x, *d: x.permute(*d))((x @ wqkv).reshape(B, S, 3, H, Dh), 2, 0, 3, 1, 4)
        q, k, v = qkv[0], qkv[1], qkv[2]
        pq = torch.einsum("bhsd,hdf->bhsf", q, w_phi)
        pk = torch.einsum("bhsd,hdf->bhsf", k, w_phi)
        phi_q = torch.concatenate([_softmax(pq, axis=-1), _softmax(-pq, axis=-1)], axis=-1)
        phi_k = torch.concatenate([_softmax(pk, axis=-1), _softmax(-pk, axis=-1)], axis=-1)
        kv = torch.einsum("bhsf,bhsd->bhfd", phi_k, v)
        z  = torch.einsum("bhsf->bhf", phi_k)
        num = torch.einsum("bhqf,bhfd->bhqd", phi_q, kv)
        den = torch.einsum("bhqf,bhf->bhq", phi_q, z)[..., None] + 1e-6
        o = num / den
        return (lambda x, *d: x.permute(*d))(o, 0, 2, 1, 3).reshape(B, S, D) @ wo

    def _B_ref(x, w_gate, w_up, w_down):
        g = torch.einsum("bsd,df->bsf", x, w_gate)
        u = torch.einsum("bsd,df->bsf", x, w_up)
        h = _gelu(g) * u
        return torch.einsum("bsf,fd->bsd", h, w_down)

    x = A_x
    h = x + _A_ref(_layernorm(x, axis=-1), A_wqkv, A_w_phi, A_wo)
    h2 = h + _B_ref(_layernorm(h, axis=-1), B_w_gate, B_w_up, B_w_down)
    return h2
```

```python
import re

_REG_RE = re.compile(r'^(-?)(?:abs\()?([vsa])(?:(\d+)|\[(\d+):(\d+)\])\)?$')

TRANS = ('v_exp_f32', 'v_log_f32', 'v_rcp_f32', 'v_rsq_f32', 'v_sqrt_f32', 'v_sin_f32', 'v_cos_f32')


def regs_of(opnd):
    o = opnd.strip()
    if o in ('vcc',):
        return {('s', 'vcc')}
    if o in ('exec',):
        return {('s', 'exec')}
    if o == 'm0':
        return {('s', 'm0')}
    m = _REG_RE.match(o)
    if not m:
        return set()
    f = m.group(2)
    if m.group(3) is not None:
        return {(f, int(m.group(3)))}
    return {(f, i) for i in range(int(m.group(4)), int(m.group(5)) + 1)}


def v(i, n=1):
    return 'v%d' % i if n == 1 else 'v[%d:%d]' % (i, i + n - 1)


def s(i, n=1):
    return 's%d' % i if n == 1 else 's[%d:%d]' % (i, i + n - 1)


def a(i, n=1):
    return 'a%d' % i if n == 1 else 'a[%d:%d]' % (i, i + n - 1)


class Ins:
    __slots__ = ('text', 'op', 'wr', 'rd', 'kind', 'passes', 'srcc', 'states', 'data', 'wide', 'dpp', 'ab')

    def __init__(self, text, op, wr, rd, kind):
        self.text, self.op, self.wr, self.rd, self.kind = text, op, wr, rd, kind
        self.passes = 0
        self.srcc = set()
        self.ab = set()
        self.states = 1
        self.data = set()
        self.wide = False
        self.dpp = False


class Kernel:
    def __init__(self, name, lds=0, grid=1, block=256):
        self.name, self.lds, self.grid, self.block = name, lds, grid, block
        self.ins = []
        self.vmq = []
        self.lgq = []
        self.maxv = 0
        self.maxs = 0
        self.maxa = -1
        self.nlabel = 0
        self._vnext = 0
        self._snext = 0
        self.hist = []

    def valloc(self, n=1, align=1):
        b = (self._vnext + align - 1) // align * align
        self._vnext = b + n
        assert self._vnext <= 256, 'out of VGPRs'
        return b

    def salloc(self, n=1, align=1):
        b = (self._snext + align - 1) // align * align
        self._snext = b + n
        assert self._snext <= 100, 'out of SGPRs'
        return b

    def vmark(self):
        return self._vnext

    def vrelease(self, mark):
        self._vnext = mark

    def _classify(self, op, ops, mods):
        wr, rd = set(), set()
        R = [regs_of(o) for o in ops]
        ins = None
        if op.startswith('v_mfma'):
            kind = 'mfma'
            wr = R[0]
            rd = R[1] | R[2] | R[3]
        elif op.startswith('v_'):
            kind = 'valu'
            if op.startswith('v_cmp'):
                wr = R[0]
                rd = set().union(*R[1:])
            elif op.startswith('v_permlane') and 'swap' in op:
                wr = R[0] | R[1]
                rd = R[0] | R[1]
            elif op in ('v_add_co_u32', 'v_sub_co_u32', 'v_subrev_co_u32', 'v_addc_co_u32', 'v_subb_co_u32'):
                wr = R[0] | R[1]
                rd = set().union(*R[2:])
            elif op == 'v_nop':
                pass
            else:
                wr = R[0]
                rd = set().union(*R[1:]) if len(R) > 1 else set()
                if op.startswith('v_fmac') or op.startswith('v_dot2c') or op.startswith('v_pk_fmac') or op.startswith('v_writelane'):
                    rd |= R[0]
                if op.startswith('v_cndmask') and len(ops) == 3:
                    rd |= {('s', 'vcc')}
                if '_dpp' in op or 'sdwa' in op:
                    rd |= R[0]
        elif op.startswith('ds_'):
            kind = 'ds'
            if op.startswith('ds_read') or op.startswith('ds_bpermute') or op.startswith('ds_permute') or op.startswith('ds_swizzle') or '_rtn' in op:
                wr = R[0]
                rd = set().union(*R[1:])
            else:
                rd = set().union(*R)
        elif op.startswith('buffer_') or op.startswith('global_'):
            kind = 'vmem'
            is_lds = bool(re.search(r'\blds\b', mods))
            if op in ('buffer_wbl2', 'buffer_inv'):
                pass
            elif op.startswith('buffer_load'):
                if is_lds:
                    rd = set().union(*R) | {('s', 'm0')}
                else:
                    wr = R[0]
                    rd = set().union(*R[1:])
            elif op.startswith('buffer_store'):
                rd = set().union(*R)
            elif op.startswith('buffer_atomic'):
                rd = set().union(*R)
                if re.search(r'\bsc0\b', mods):
                    wr = R[0]
            elif op.startswith('global_load'):
                wr = R[0]
                rd = set().union(*R[1:])
            elif op.startswith('global_store'):
                rd = set().union(*R)
            elif op.startswith('global_atomic'):
                if re.search(r'\bsc0\b', mods):
                    wr = R[0]
                    rd = set().union(*R[1:])
                else:
                    rd = set().union(*R)
            else:
                raise ValueError(op)
        elif op.startswith('s_load') or op in ('s_memtime', 's_memrealtime'):
            kind = 'smem'
            wr = R[0]
            rd = set().union(*R[1:]) if len(R) > 1 else set()
        elif op.startswith('s_'):
            kind = 'salu'
            if op.startswith('s_cmp') or op.startswith('s_cbranch') or op in (
                    's_waitcnt', 's_barrier', 's_nop', 's_branch', 's_endpgm', 's_sleep', 's_setprio', 's_bitcmp0_b32', 's_bitcmp1_b32'):
                rd = set().union(*R) if R else set()
            else:
                wr = R[0]
                rd = set().union(*R[1:]) if len(R) > 1 else set()
                if 'saveexec' in op:
                    wr = wr | {('s', 'exec')}
                if op in ('s_addk_i32', 's_mulk_i32'):
                    rd |= R[0]
        else:
            raise ValueError('unknown op ' + op)
        text = '    ' + op + (' ' + ', '.join(ops) if ops else '') + ((' ' + mods) if mods else '')
        ins = Ins(text, op, wr, rd, kind)
        if kind == 'mfma':
            ins.passes = 8 if '32x32x16' in op else 4
            ins.srcc = R[3]
            ins.ab = R[1] | R[2]
        if kind == 'vmem' and ('store' in op) and ('x4' in op or 'x3' in op):
            ins.wide = True
            ins.data = R[0] if op.startswith('buffer') else R[1]
        if kind == 'valu' and ('_dpp' in op):
            ins.dpp = True
        if op == 's_nop':
            ins.states = int(ops[0]) + 1
        return ins

    def _need(self, p, c):
        n = 0
        isv = lambda S: {r for r in S if r[0] in 'va'}
        iss = lambda S: {r for r in S if r[0] == 's'}
        if p.kind == 'valu':
            pw = isv(p.wr)
            if pw:
                if c.kind == 'mfma' and pw & c.rd:
                    n = max(n, 2)
                if c.kind == 'valu':
                    if c.op.startswith('v_permlane') and pw & c.rd:
                        n = max(n, 2)
                    if c.dpp and pw & c.rd:
                        n = max(n, 2)
                    if c.op.startswith('v_read') and pw & c.rd:
                        n = max(n, 1)
                if p.op in TRANS and pw & c.rd:
                    n = max(n, 1)
                if p.op.startswith('v_dot'):
                    if pw & (c.rd | c.wr):
                        same_acc = (c.op == p.op) and not (pw & self._dot_ab(c))
                        if not same_acc:
                            n = max(n, 3)
                if ('sdwa' in p.op and 'dst_sel:DWORD' not in p.text) and pw & (c.rd | c.wr):
                    n = max(n, 1)
            sw = iss(p.wr)
            if sw:
                if c.kind == 'valu' and sw & c.rd:
                    n = max(n, 4 if c.op.startswith('v_readlane') or c.op.startswith('v_writelane') else 2)
                if c.kind == 'mfma' and sw & c.rd:
                    n = max(n, 2)
                if c.kind == 'vmem' and sw & c.rd:
                    n = max(n, 5)
                if c.kind in ('salu', 'smem') and sw & c.rd:
                    n = max(n, 1)
        if p.kind == 'mfma':
            big = 12 if p.passes == 8 else 8
            ovl = 10 if p.passes == 8 else 6
            war = 7 if p.passes == 8 else 3
            if c.kind == 'mfma':
                if p.wr & c.ab:
                    n = max(n, big)
                if p.wr & c.srcc:
                    if not (p.wr == c.srcc and p.passes == c.passes):
                        n = max(n, ovl)
                elif p.wr & c.wr:
                    n = max(n, ovl)
            else:
                if p.wr & (c.rd | c.wr):
                    n = max(n, big)
                if c.kind == 'valu' and p.srcc & c.wr:
                    n = max(n, war)
                if c.kind in ('ds', 'vmem') and p.srcc & c.wr:
                    n = max(n, war)
        if p.kind == 'salu' and ('s', 'm0') in p.wr and ('s', 'm0') in c.rd:
            n = max(n, 1)
        if p.kind == 'vmem' and p.wide and p.data & c.wr:
            n = max(n, 2)
        return n

    @staticmethod
    def _dot_ab(c):
        ops = c.text.strip().split(None, 1)[1].split(',')
        return regs_of(ops[1]) | regs_of(ops[2].split()[0])

    def _hazard(self, c):
        need = 0
        dist = 0
        for p in reversed(self.hist):
            r = self._need(p, c)
            if r > dist:
                need = max(need, r - dist)
            dist += p.states
            if dist >= 16:
                break
        while need > 0:
            k = min(need, 16)
            nop = self._classify('s_nop', [str(k - 1)], '')
            self.ins.append(nop)
            self.hist.append(nop)
            need -= k

    def _auto_wait(self, c):
        touch = c.rd | c.wr
        vm_n = None
        for i, (regs, tag) in enumerate(self.vmq):
            if regs & touch:
                vm_n = len(self.vmq) - 1 - i
        lg_n = None
        for i, (regs, smem) in enumerate(self.lgq):
            if regs & touch:
                lg_n = len(self.lgq) - 1 - i
        if lg_n is not None and any(sm for _, sm in self.lgq):
            lg_n = 0
        if vm_n is not None or lg_n is not None:
            self.wait(vm=vm_n, lgkm=lg_n)

    def wait(self, vm=None, lgkm=None):
        parts = []
        if vm is not None:
            vm = min(vm, 63)
            if len(self.vmq) > vm:
                parts.append('vmcnt(%d)' % vm)
                self.vmq = self.vmq[len(self.vmq) - vm:] if vm else []
        if lgkm is not None:
            lgkm = min(lgkm, 15)
            if len(self.lgq) > lgkm:
                parts.append('lgkmcnt(%d)' % lgkm)
                self.lgq = self.lgq[len(self.lgq) - lgkm:] if lgkm else []
        if parts:
            ins = Ins('    s_waitcnt ' + ' '.join(parts), 's_waitcnt', set(), set(), 'salu')
            self.ins.append(ins)
            self.hist.append(ins)

    def wait_tag(self, tag):
        last = None
        for i, (regs, t) in enumerate(self.vmq):
            if t == tag:
                last = i
        if last is not None:
            self.wait(vm=len(self.vmq) - 1 - last)

    def wait_all(self):
        ins = Ins('    s_waitcnt vmcnt(0) lgkmcnt(0)', 's_waitcnt', set(), set(), 'salu')
        self.ins.append(ins)
        self.hist.append(ins)
        self.vmq, self.lgq = [], []

    def e(self, op, *ops, mods='', tag=None):
        ops = [str(o) for o in ops]
        c = self._classify(op, ops, mods)
        self._auto_wait(c)
        self._hazard(c)
        self.ins.append(c)
        self.hist.append(c)
        if len(self.hist) > 64:
            self.hist = self.hist[-32:]
        for f, i in (c.rd | c.wr):
            if isinstance(i, int):
                if f == 'v':
                    self.maxv = max(self.maxv, i + 1)
                elif f == 's':
                    self.maxs = max(self.maxs, i + 1)
                else:
                    self.maxa = max(self.maxa, i)
        if c.kind == 'vmem':
            self.vmq.append((set(c.wr), tag))
        elif c.kind == 'ds':
            self.lgq.append((set(c.wr), False))
        elif c.kind == 'smem':
            self.lgq.append((set(c.wr), True))
        return c

    def c(self, text):
        self.ins.append('    ; ' + text)

    def label(self, name=None):
        if name is None:
            self.nlabel += 1
            name = 'L_%s_%d' % (self.name, self.nlabel)
        return name

    def place(self, name, pad=True):
        self.ins.append(name + ':')
        if pad:
            nop = self._classify('s_nop', ['7'], '')
            self.ins.append(nop)
            nop2 = self._classify('s_nop', ['3'], '')
            self.ins.append(nop2)
            self.hist = [nop, nop2]

    def barrier(self):
        self.wait(lgkm=0)
        self.e('s_barrier')

    def body(self):
        out = ['.p2align 8', '.globl %s' % self.name, '.type %s,@function' % self.name, self.name + ':']
        for i in self.ins:
            out.append(i if isinstance(i, str) else i.text)
        return '\n'.join(out) + '\n'

    def desc(self):
        nv = max(self.maxv, 8)
        acc = (nv + 3) // 4 * 4
        total = acc + (self.maxa + 1) if self.maxa >= 0 else nv
        ns = max(self.maxs, 16)
        return ('.p2align 6\n.amdhsa_kernel %s\n'
                '  .amdhsa_next_free_vgpr %d\n'
                '  .amdhsa_next_free_sgpr %d\n'
                '  .amdhsa_accum_offset %d\n'
                '  .amdhsa_group_segment_fixed_size 0\n'
                '  .amdhsa_kernarg_size 88\n'
                '  .amdhsa_user_sgpr_count 2\n'
                '  .amdhsa_user_sgpr_kernarg_segment_ptr 1\n'
                '  .amdhsa_system_sgpr_workgroup_id_x 1\n'
                '  .amdhsa_float_denorm_mode_32 3\n'
                '  .amdhsa_float_denorm_mode_16_64 3\n'
                '.end_amdhsa_kernel\n') % (self.name, total, ns, acc)


def build_file(header_lines, kernels, launches):
    out = list(header_lines)
    for k in launches:
        out.append('; @launch kernel=%s grid=(%d,1,1) block=(%d,1,1) lds=%d' % (k.name, k.grid, k.block, k.lds))
    out.append('.amdgcn_target "amdgcn-amd-amdhsa--gfx950"')
    out.append('.text')
    txt = '\n'.join(out) + '\n'
    for k in kernels:
        txt += k.body()
    txt += '.section .rodata,"a"\n'
    for k in kernels:
        txt += k.desc()
    return txt
```

```python
import sys, os, struct
sys.path.insert(0, os.path.dirname(os.path.abspath(__file__)))
from asmlib import *

NAME = 'sequential_preLN__linear_kernel_hedgehog__glu_gated_geglu__prompt'

KA_X, KA_WQKV, KA_WPHI, KA_WO, KA_BX, KA_WG, KA_WU, KA_WD, KA_OUT, KA_DBG, KA_WS = [8 * i for i in range(11)]
XN = 0
WQKV = 0x200000
WPHI = 0x380000
WO = 0x400000
WGU = 0x500000
CS = 0x820000
WD = 0x900000
PHIQ = 0xB00000
KVP = 0xF00000
OF = 0x1100000
HF = 0x1300000
STATS = 0x1500000
HH = 0x1600000
WS_USED = 0x1D00000
OOB = 0x40000000

LOG2E = 1.4426950408889634


def f32(x):
    return '0x%08x' % struct.unpack('<I', struct.pack('<f', x))[0]


def load_srd(k, sd, ka_off, nbytes, tmp):
    k.e('s_load_dwordx2', s(tmp, 2), 's[0:1]', ka_off)


def make_srd(k, sd, tmp, nbytes):
    k.e('s_mov_b32', s(sd), s(tmp))
    k.e('s_and_b32', s(sd + 1), s(tmp + 1), '0xffff')
    k.e('s_mov_b32', s(sd + 2), hex(nbytes))
    k.e('s_mov_b32', s(sd + 3), '0x20000')


def bf16_round(k, dst, src):
    k.e('v_cvt_pk_bf16_f32', v(dst), v(src), v(src))
    k.e('v_lshlrev_b32', v(dst), 16, v(dst))


def swap_op(k, op, x, tmp):
    k.e('v_mov_b32', v(tmp), v(x))
    k.e('v_permlane32_swap_b32', v(x), v(tmp))
    k.e(op, v(x), v(x), v(tmp))


N_LN, N_QKV, N_WO, N_GU, N_WD, N_PHI = 256, 192, 56, 448, 224, 16


def gen_k0():
    njobs = N_LN + N_QKV + N_WO + N_GU + N_WD + N_PHI
    k = Kernel('prep_kernel', lds=0, grid=(njobs + 3) // 4, block=256)
    k._snext = 4
    S_WS = k.salloc(4, 4)
    S_SRC = k.salloc(4, 4)
    S_T = k.salloc(2, 2)
    S_T2 = k.salloc(2, 2)
    s_job = k.salloc()
    s_a, s_b, s_c, s_d, s_off, s_dst = [k.salloc() for _ in range(6)]
    s_ones = k.salloc()
    k._vnext = 1
    v_lane, v_n, v_hi, v_t, v_off, v_off2, v_dst = [k.valloc() for _ in range(7)]
    v_cs = k.valloc()
    v_ld = k.valloc(64, 4)
    v_pk = k.valloc(32, 4)

    L_end = k.label()
    k.e('s_load_dwordx2', s(S_T, 2), 's[0:1]', KA_WS)
    k.e('v_lshrrev_b32', v(v_t), 6, 'v0')
    k.e('v_and_b32', v(v_lane), 63, 'v0')
    k.e('v_readfirstlane_b32', s(s_job), v(v_t))
    k.e('s_lshl_b32', s(s_a), 's2', 2)
    k.e('s_add_u32', s(s_job), s(s_job), s(s_a))
    k.e('v_and_b32', v(v_n), 31, v(v_lane))
    k.e('v_lshrrev_b32', v(v_hi), 5, v(v_lane))
    make_srd(k, S_WS, S_T, WS_USED)
    k.e('s_mov_b32', s(s_ones), '0x3f803f80')
    k.e('s_cmp_ge_u32', s(s_job), njobs)
    k.e('s_cbranch_scc1', L_end)

    labels = {n: k.label() for n in ('qkv', 'wo', 'gu', 'wd', 'phi')}
    k.e('s_cmp_ge_u32', s(s_job), N_LN)
    k.e('s_cbranch_scc1', labels['qkv'])

    k.c('LN job: 8 rows per wave')
    k.e('s_load_dwordx2', s(S_T2, 2), 's[0:1]', KA_X)
    v_r, v_c = v_n, v_hi
    k.e('v_lshrrev_b32', v(v_r), 3, v(v_lane))
    k.e('v_and_b32', v(v_c), 7, v(v_lane))
    k.e('s_lshl_b32', s(s_a), s(s_job), 3)
    k.e('v_add_u32', v(v_r), s(s_a), v(v_r))
    k.e('v_mul_u32_u24', v(v_off), 896, v(v_r))
    k.e('v_lshl_add_u32', v(v_off), v(v_c), 4, v(v_off))
    make_srd(k, S_SRC, S_T2, 2048 * 896)
    mk = k.vmark()
    v_raw = v_pk
    v_f = v_ld
    for m in range(7):
        k.e('buffer_load_dwordx4', v(v_raw + 4 * m, 4), v(v_off), s(S_SRC, 4), 0, mods='offen offset:%d' % (128 * m))
    v_a, v_b, v_sum, v_m, v_rs = [k.valloc() for _ in range(5)]
    k.e('v_lshrrev_b32', v(v_a), 5, v(v_r))
    k.e('v_mul_u32_u24', v(v_dst), 28672, v(v_a))
    k.e('v_lshrrev_b32', v(v_a), 1, v(v_c))
    k.e('v_lshl_add_u32', v(v_dst), v(v_a), 10, v(v_dst))
    k.e('v_and_b32', v(v_a), 31, v(v_r))
    k.e('v_and_b32', v(v_b), 1, v(v_c))
    k.e('v_lshl_add_u32', v(v_a), v(v_b), 5, v(v_a))
    k.e('v_lshl_add_u32', v(v_dst), v(v_a), 4, v(v_dst))
    for i in range(28):
        k.e('v_lshlrev_b32', v(v_f + 2 * i), 16, v(v_raw + i))
        k.e('v_and_b32', v(v_f + 2 * i + 1), '0xffff0000', v(v_raw + i))
    k.e('v_add_f32', v(v_sum), v(v_f), v(v_f + 1))
    k.e('v_add_f32', v(v_a), v(v_f + 2), v(v_f + 3))
    for i in range(4, 56, 2):
        k.e('v_add_f32', v(v_sum), v(v_sum), v(v_f + i))
        k.e('v_add_f32', v(v_a), v(v_a), v(v_f + i + 1))
    k.e('v_add_f32', v(v_sum), v(v_sum), v(v_a))

    def red8(x):
        k.e('v_add_f32_dpp', v(x), v(x), v(x), mods='quad_perm:[1,0,3,2] row_mask:0xf bank_mask:0xf')
        k.e('v_add_f32_dpp', v(x), v(x), v(x), mods='quad_perm:[2,3,0,1] row_mask:0xf bank_mask:0xf')
        k.e('v_add_f32_dpp', v(x), v(x), v(x), mods='row_half_mirror row_mask:0xf bank_mask:0xf')
    red8(v_sum)
    k.e('v_mul_f32', v(v_m), f32(1.0 / 448), v(v_sum))
    k.e('v_sub_f32', v(v_a), v(v_f), v(v_m))
    k.e('v_mul_f32', v(v_sum), v(v_a), v(v_a))
    k.e('v_sub_f32', v(v_b), v(v_f + 1), v(v_m))
    k.e('v_mul_f32', v(v_rs), v(v_b), v(v_b))
    for i in range(2, 56, 2):
        k.e('v_sub_f32', v(v_a), v(v_f + i), v(v_m))
        k.e('v_sub_f32', v(v_b), v(v_f + i + 1), v(v_m))
        k.e('v_fmac_f32', v(v_sum), v(v_a), v(v_a))
        k.e('v_fmac_f32', v(v_rs), v(v_b), v(v_b))
    k.e('v_add_f32', v(v_sum), v(v_sum), v(v_rs))
    red8(v_sum)
    k.e('v_mul_f32', v(v_sum), f32(1.0 / 448), v(v_sum))
    bf16_round(k, v_sum, v_sum)
    k.e('v_add_f32', v(v_sum), f32(1e-5), v(v_sum))
    bf16_round(k, v_sum, v_sum)
    k.e('v_sqrt_f32', v(v_sum), v(v_sum))
    bf16_round(k, v_sum, v_sum)
    k.e('v_rcp_f32', v(v_rs), v(v_sum))
    bf16_round(k, v_m, v_m)
    for i in range(28):
        x0, x1 = v_f + 2 * i, v_f + 2 * i + 1
        k.e('v_sub_f32', v(x0), v(x0), v(v_m))
        k.e('v_sub_f32', v(x1), v(x1), v(v_m))
        k.e('v_cvt_pk_bf16_f32', v(v_a), v(x0), v(x1))
        k.e('v_lshlrev_b32', v(x0), 16, v(v_a))
        k.e('v_and_b32', v(x1), '0xffff0000', v(v_a))
        k.e('v_mul_f32', v(x0), v(x0), v(v_rs))
        k.e('v_mul_f32', v(x1), v(x1), v(v_rs))
        k.e('v_cvt_pk_bf16_f32', v(v_raw + i), v(x0), v(x1))
    for m in range(7):
        k.e('s_mov_b32', s(s_off), hex(XN + 4096 * m))
        k.e('buffer_store_dwordx4', v(v_raw + 4 * m, 4), v(v_dst), s(S_WS, 4), s(s_off), mods='offen')
    k.e('s_endpgm')
    k.vrelease(mk)

    def swz(nfrag, stride, perm, row_of, voff_of, dst_of, colsum=False):
        for fi in range(nfrag):
            for j in range(8):
                kj = (8 * (j >> 2) + (j & 3)) if perm else j
                k.e('s_add_u32', s(s_off), s(s_a), (row_of(fi) + kj) * stride)
                k.e('buffer_load_ushort', v(v_ld + 8 * fi + j), v(voff_of(fi, j)), s(S_SRC, 4), s(s_off), mods='offen')
        for fi in range(nfrag):
            for d in range(4):
                k.e('v_lshl_or_b32', v(v_pk + 4 * fi + d), v(v_ld + 8 * fi + 2 * d + 1), 16, v(v_ld + 8 * fi + 2 * d))
            if colsum:
                for d in range(4):
                    k.e('v_dot2_f32_bf16', v(v_cs), v(v_pk + 4 * fi + d), s(s_ones), v(v_cs))
            k.e('s_add_u32', s(s_off), s(s_dst), dst_of(fi))
            k.e('buffer_store_dwordx4', v(v_pk + 4 * fi, 4), v(v_dst), s(S_WS, 4), s(s_off), mods='offen')

    def start(name, nxt, lim, ka, nbytes, base):
        k.place(labels[name])
        k.vmq, k.lgq = [], []
        if nxt:
            k.e('s_cmp_ge_u32', s(s_job), lim)
            k.e('s_cbranch_scc1', labels[nxt])
        k.e('s_load_dwordx2', s(S_T2, 2), 's[0:1]', ka) if ka is not None else None
        k.e('s_sub_u32', s(s_job), s(s_job), base)
        k.e('v_lshlrev_b32', v(v_dst), 4, v(v_lane))

    b0 = N_LN
    start('qkv', 'wo', b0 + N_QKV, KA_WQKV, 0, b0)
    k.e('s_and_b32', s(s_c), s(s_job), 3)
    k.e('s_lshr_b32', s(s_b), s(s_job), 2)
    k.e('s_mul_i32', s(s_d), s(s_b), 21846)
    k.e('s_lshr_b32', s(s_d), s(s_d), 16)
    k.e('s_mul_i32', s(s_a), s(s_d), 3)
    k.e('s_sub_u32', s(s_b), s(s_b), s(s_a))
    k.e('s_add_u32', s(s_a), s(s_b), 1)
    k.e('s_cmp_eq_u32', s(s_a), 3)
    k.e('s_cselect_b32', s(s_a), 0, s(s_a))
    k.e('s_mul_i32', s(s_a), s(s_a), 896)
    k.e('s_mul_i32', s(s_off), s(s_d), 56)
    k.e('s_add_u32', s(s_a), s(s_a), s(s_off))
    k.e('s_mul_i32', s(s_off), s(s_c), 112 * 2688)
    k.e('s_add_u32', s(s_a), s(s_a), s(s_off))
    k.e('s_mul_i32', s(s_dst), s(s_d), 28)
    k.e('s_mul_i32', s(s_off), s(s_c), 7)
    k.e('s_add_u32', s(s_dst), s(s_dst), s(s_off))
    k.e('s_mul_i32', s(s_dst), s(s_dst), 3)
    k.e('s_add_u32', s(s_dst), s(s_dst), s(s_b))
    k.e('s_lshl_b32', s(s_dst), s(s_dst), 10)
    k.e('s_add_u32', s(s_dst), s(s_dst), hex(WQKV))
    k.e('v_mul_u32_u24', v(v_off), 8 * 2688, v(v_hi))
    k.e('v_lshl_add_u32', v(v_off), v(v_n), 1, v(v_off))
    k.e('v_mov_b32', v(v_t), hex(OOB))
    k.e('v_cmp_gt_u32', 'vcc', 28, v(v_n))
    k.e('v_cndmask_b32', v(v_off), v(v_t), v(v_off), 'vcc')
    make_srd(k, S_SRC, S_T2, 448 * 2688)
    swz(7, 2688, False, lambda fi: 16 * fi, lambda fi, j: v_off, lambda fi: 3072 * fi)
    k.e('s_endpgm')

    b0 += N_QKV
    start('wo', 'gu', b0 + N_WO, KA_WO, 0, b0)
    k.e('s_and_b32', s(s_c), s(s_job), 3)
    k.e('s_lshr_b32', s(s_b), s(s_job), 2)
    k.e('s_mul_i32', s(s_a), s(s_c), 4 * 28 * 896)
    k.e('s_lshl_b32', s(s_off), s(s_b), 6)
    k.e('s_add_u32', s(s_a), s(s_a), s(s_off))
    k.e('s_lshl_b32', s(s_dst), s(s_b), 5)
    k.e('s_lshl_b32', s(s_off), s(s_c), 3)
    k.e('s_add_u32', s(s_dst), s(s_dst), s(s_off))
    k.e('s_lshl_b32', s(s_dst), s(s_dst), 10)
    k.e('s_add_u32', s(s_dst), s(s_dst), hex(WO))
    k.e('v_mul_u32_u24', v(v_off), 4 * 896, v(v_hi))
    k.e('v_lshl_add_u32', v(v_off), v(v_n), 1, v(v_off))
    k.e('v_mov_b32', v(v_t), hex(OOB))
    k.e('v_cmp_eq_u32', 'vcc', 0, v(v_hi))
    k.e('v_cndmask_b32', v(v_off2), v(v_t), v(v_off), 'vcc')
    make_srd(k, S_SRC, S_T2, 448 * 896)
    swz(8, 896, True, lambda fi: 28 * (fi >> 1) + 16 * (fi & 1),
        lambda fi, j: v_off2 if ((fi & 1) and j >= 4) else v_off, lambda fi: 1024 * fi)
    k.e('s_endpgm')

    b0 += N_WO
    start('gu', 'wd', b0 + N_GU, None, 0, b0)
    k.e('s_and_b32', s(s_c), s(s_job), 3)
    k.e('s_lshr_b32', s(s_b), s(s_job), 2)
    k.e('s_cmp_ge_u32', s(s_b), 56)
    k.e('s_cselect_b32', s(s_d), 1, 0)
    k.e('s_mul_i32', s(s_a), s(s_d), 56)
    k.e('s_sub_u32', s(s_b), s(s_b), s(s_a))
    k.e('s_load_dwordx4', s(S_SRC, 4), 's[0:1]', KA_WG)
    k.e('s_cmp_eq_u32', s(s_d), 0)
    k.e('s_cselect_b32', s(S_T2), s(S_SRC), s(S_SRC + 2))
    k.e('s_cselect_b32', s(S_T2 + 1), s(S_SRC + 1), s(S_SRC + 3))
    make_srd(k, S_SRC, S_T2, 448 * 3584)
    k.e('s_mul_i32', s(s_a), s(s_c), 112 * 3584)
    k.e('s_lshl_b32', s(s_off), s(s_b), 6)
    k.e('s_add_u32', s(s_a), s(s_a), s(s_off))
    k.e('s_mul_i32', s(s_dst), s(s_b), 56)
    k.e('s_mul_i32', s(s_off), s(s_c), 7)
    k.e('s_add_u32', s(s_dst), s(s_dst), s(s_off))
    k.e('s_lshl_b32', s(s_dst), s(s_dst), 10)
    k.e('s_lshl_b32', s(s_off), s(s_d), 8)
    k.e('s_add_u32', s(s_dst), s(s_dst), s(s_off))
    k.e('s_add_u32', s(s_dst), s(s_dst), hex(WGU))
    k.e('v_lshrrev_b32', v(v_t), 4, v(v_n))
    k.e('v_mul_u32_u24', v(v_dst), 28672, v(v_t))
    k.e('v_and_b32', v(v_off2), 15, v(v_n))
    k.e('v_lshl_add_u32', v(v_off2), v(v_hi), 5, v(v_off2))
    k.e('v_lshl_add_u32', v(v_dst), v(v_off2), 4, v(v_dst))
    k.e('v_mul_u32_u24', v(v_off), 4 * 3584, v(v_hi))
    k.e('v_lshl_add_u32', v(v_off), v(v_n), 1, v(v_off))
    k.e('v_mov_b32', v(v_cs), 0)
    swz(7, 3584, True, lambda fi: 16 * fi, lambda fi, j: v_off, lambda fi: 1024 * fi, colsum=True)
    swap_op(k, 'v_add_f32', v_cs, v_off)
    k.e('v_lshrrev_b32', v(v_t), 4, v(v_n))
    k.e('v_and_b32', v(v_off), 15, v(v_n))
    k.e('v_lshl_add_u32', v(v_off), v(v_t), 5, v(v_off))
    k.e('v_lshlrev_b32', v(v_off), 2, v(v_off))
    k.e('v_mov_b32', v(v_t), hex(OOB))
    k.e('v_cmp_eq_u32', 'vcc', 0, v(v_hi))
    k.e('v_cndmask_b32', v(v_off), v(v_t), v(v_off), 'vcc')
    k.e('s_mul_i32', s(s_off), s(s_c), 112 * 128)
    k.e('s_lshl_b32', s(s_a), s(s_b), 8)
    k.e('s_add_u32', s(s_off), s(s_off), s(s_a))
    k.e('s_lshl_b32', s(s_a), s(s_d), 6)
    k.e('s_add_u32', s(s_off), s(s_off), s(s_a))
    k.e('s_add_u32', s(s_off), s(s_off), hex(CS))
    k.e('buffer_store_dword', v(v_cs), v(v_off), s(S_WS, 4), s(s_off), mods='offen')
    k.e('s_endpgm')

    b0 += N_GU
    start('wd', 'phi', b0 + N_WD, KA_WD, 0, b0)
    k.e('s_and_b32', s(s_c), s(s_job), 15)
    k.e('s_lshr_b32', s(s_b), s(s_job), 4)
    k.e('s_mul_i32', s(s_a), s(s_c), 112 * 896)
    k.e('s_lshl_b32', s(s_off), s(s_b), 6)
    k.e('s_add_u32', s(s_a), s(s_a), s(s_off))
    k.e('s_mul_i32', s(s_dst), s(s_b), 112)
    k.e('s_mul_i32', s(s_off), s(s_c), 7)
    k.e('s_add_u32', s(s_dst), s(s_dst), s(s_off))
    k.e('s_lshl_b32', s(s_dst), s(s_dst), 10)
    k.e('s_add_u32', s(s_dst), s(s_dst), hex(WD))
    k.e('v_mul_u32_u24', v(v_off), 4 * 896, v(v_hi))
    k.e('v_lshl_add_u32', v(v_off), v(v_n), 1, v(v_off))
    make_srd(k, S_SRC, S_T2, 1792 * 896)
    swz(7, 896, True, lambda fi: 16 * fi, lambda fi, j: v_off, lambda fi: 1024 * fi)
    k.e('s_endpgm')

    b0 += N_WD
    start('phi', None, 0, KA_WPHI, 0, b0)
    k.e('s_mul_i32', s(s_a), s(s_job), 1568)
    k.e('s_lshl_b32', s(s_dst), s(s_job), 11)
    k.e('s_add_u32', s(s_dst), s(s_dst), hex(WPHI))
    k.e('v_subrev_u32', v(v_t), 28, v(v_n))
    k.e('v_cmp_gt_u32', 'vcc', 28, v(v_n))
    k.e('v_cndmask_b32', v(v_t), v(v_t), v(v_n), 'vcc')
    k.e('v_mul_u32_u24', v(v_off), 4 * 56, v(v_hi))
    k.e('v_lshl_add_u32', v(v_off), v(v_t), 1, v(v_off))
    k.e('v_mov_b32', v(v_t), hex(OOB))
    k.e('v_cmp_eq_u32', 'vcc', 0, v(v_hi))
    k.e('v_cndmask_b32', v(v_off2), v(v_t), v(v_off), 'vcc')
    make_srd(k, S_SRC, S_T2, 16 * 1568)
    swz(2, 56, True, lambda fi: 16 * fi, lambda fi, j: v_off2 if (fi == 1 and j >= 4) else v_off, lambda fi: 1024 * fi)
    k.place(L_end, pad=False)
    k.e('s_endpgm')
    return k


def rb_hd_decode(k, s_rb, s_hd, s_t):
    k.e('s_and_b32', s(s_t), 's2', 3)
    k.e('s_lshl_b32', s(s_rb), s(s_t), 2)
    k.e('s_bfe_u32', s(s_t), 's2', hex((2 << 16) | 3))
    k.e('s_add_u32', s(s_rb), s(s_rb), s(s_t))
    k.e('s_bfe_u32', s(s_hd), 's2', hex((1 << 16) | 2))
    k.e('s_lshl_b32', s(s_hd), s(s_hd), 3)
    k.e('s_lshr_b32', s(s_t), 's2', 5)
    k.e('s_add_u32', s(s_hd), s(s_hd), s(s_t))


def softmax_pm(k, p, outp, outm, tmp, v_mask, s_l2e):
    mx, mn, t0, sp, sm = tmp, tmp + 1, tmp + 2, tmp + 3, tmp + 4
    sp2, sm2 = tmp + 5, tmp + 6
    em = tmp + 8
    k.e('v_max3_f32', v(mx), v(p), v(p + 1), v(p + 2))
    k.e('v_min3_f32', v(mn), v(p), v(p + 1), v(p + 2))
    for i in range(3, 15, 2):
        k.e('v_max3_f32', v(mx), v(mx), v(p + i), v(p + i + 1))
        k.e('v_min3_f32', v(mn), v(mn), v(p + i), v(p + i + 1))
    k.e('v_max_f32', v(mx), v(mx), v(p + 15))
    k.e('v_min_f32', v(mn), v(mn), v(p + 15))
    swap_op(k, 'v_max_f32', mx, t0)
    swap_op(k, 'v_min_f32', mn, t0)
    k.e('v_mul_f32', v(mx), s(s_l2e), v(mx))
    k.e('v_mul_f32', v(mn), s(s_l2e), v(mn))
    for i in range(16):
        k.e('v_fma_f32', v(em + i), '-' + v(p + i), s(s_l2e), v(mn))
        k.e('v_fma_f32', v(p + i), v(p + i), s(s_l2e), '-' + v(mx))
    for i in range(16):
        k.e('v_exp_f32', v(em + i), v(em + i))
        k.e('v_exp_f32', v(p + i), v(p + i))
    k.e('v_add_f32', v(sp), v(p), v(p + 1))
    k.e('v_add_f32', v(sm), v(em), v(em + 1))
    for i in range(2, 12):
        k.e('v_add_f32', v(sp), v(sp), v(p + i))
        k.e('v_add_f32', v(sm), v(sm), v(em + i))
    k.e('v_add_f32', v(sp2), v(p + 12), v(p + 13))
    k.e('v_add_f32', v(sm2), v(em + 12), v(em + 13))
    for i in (14, 15):
        k.e('v_add_f32', v(sp2), v(sp2), v(p + i))
        k.e('v_add_f32', v(sm2), v(sm2), v(em + i))
    k.e('v_fmac_f32', v(sp), v(sp2), v(v_mask))
    k.e('v_fmac_f32', v(sm), v(sm2), v(v_mask))
    swap_op(k, 'v_add_f32', sp, t0)
    swap_op(k, 'v_add_f32', sm, t0)
    k.e('v_rcp_f32', v(sp), v(sp))
    k.e('v_rcp_f32', v(sm), v(sm))
    k.e('v_mul_f32', v(sp2), v(sp), v(v_mask))
    k.e('v_mul_f32', v(sm2), v(sm), v(v_mask))
    for i in range(16):
        k.e('v_mul_f32', v(p + i), v(p + i), v(sp if i < 12 else sp2))
        k.e('v_mul_f32', v(em + i), v(em + i), v(sm if i < 12 else sm2))
    for i in range(8):
        k.e('v_cvt_pk_bf16_f32', v(outp + i), v(p + 2 * i), v(p + 2 * i + 1))
        k.e('v_cvt_pk_bf16_f32', v(outm + i), v(em + 2 * i), v(em + 2 * i + 1))


MF32 = 'v_mfma_f32_32x32x16_bf16'
MF16 = 'v_mfma_f32_16x16x32_bf16'


def gen_k1a():
    L_PHIK = 86016
    L_V = L_PHIK + 128 * 136
    k = Kernel('qkv_kernel', lds=L_V + 128 * 72, grid=256, block=256)
    k._snext = 4
    S_WS = k.salloc(4, 4)
    S_T = k.salloc(2, 2)
    s_rb, s_hd, s_w, s_t, s_wb, s_xb, s_off, s_l2e, s_T = [k.salloc() for _ in range(9)]
    k._vnext = 1
    v_lane, v_l16, v_t, v_mask, v_row, v_hi, v_a, v_b = [k.valloc() for _ in range(8)]
    v_x = k.valloc(112, 4)
    v_w = k.valloc(48, 4)
    v_acc = k.valloc(48, 4)
    v_phi = k.valloc(8, 4)
    L_end = k.label()
    k.e('s_cmp_ge_u32', 's2', 256)
    k.e('s_cbranch_scc1', L_end)
    k.e('s_load_dwordx2', s(S_T, 2), 's[0:1]', KA_WS)
    k.e('v_lshrrev_b32', v(v_t), 6, 'v0')
    k.e('v_and_b32', v(v_lane), 63, 'v0')
    k.e('v_readfirstlane_b32', s(s_w), v(v_t))
    k.e('v_lshlrev_b32', v(v_l16), 4, v(v_lane))
    rb_hd_decode(k, s_rb, s_hd, s_t)
    k.e('s_lshl_b32', s(s_T), s(s_rb), 2)
    k.e('s_add_u32', s(s_T), s(s_T), s(s_w))
    k.e('s_mul_i32', s(s_xb), s(s_T), 28672)
    k.e('s_add_u32', s(s_xb), s(s_xb), hex(XN)) if XN else None
    k.e('s_mul_i32', s(s_wb), s(s_hd), 86016)
    k.e('s_add_u32', s(s_wb), s(s_wb), hex(WQKV))
    k.e('s_mul_i32', s(s_t), s(s_w), 3072)
    k.e('s_add_u32', s(s_wb), s(s_wb), s(s_t))
    k.e('s_mov_b32', s(s_l2e), f32(LOG2E))
    make_srd(k, S_WS, S_T, WS_USED)
    for ph in range(7):
        k.e('s_add_u32', 'm0', s(s_t), 12288 * ph)
        k.e('s_add_u32', s(s_off), s(s_wb), 12288 * ph)
        for i in range(3):
            k.e('buffer_load_dwordx4', v(v_l16), s(S_WS, 4), s(s_off), mods='offen offset:%d lds' % (1024 * i), tag='ph%d' % ph)
        k.e('s_add_u32', s(s_off), s(s_xb), 4096 * ph)
        for i in range(4):
            ks = 4 * ph + i
            k.e('buffer_load_dwordx4', v(v_x + 4 * ks, 4), v(v_l16), s(S_WS, 4), s(s_off), mods='offen offset:%d' % (1024 * i))
    k.e('s_lshl_b32', s(s_off), s(s_hd), 11)
    k.e('s_add_u32', s(s_off), s(s_off), hex(WPHI))
    for u in range(2):
        k.e('buffer_load_dwordx4', v(v_phi + 4 * u, 4), v(v_l16), s(S_WS, 4), s(s_off), mods='offen offset:%d' % (1024 * u))
    k.e('v_and_b32', v(v_row), 31, v(v_lane))
    k.e('v_lshrrev_b32', v(v_hi), 5, v(v_lane))
    k.e('v_cmp_eq_u32', 'vcc', 0, v(v_hi))
    k.e('v_cndmask_b32', v(v_mask), 0, '1.0', 'vcc')
    k.e('v_add_u32', v(v_a), 49152, v(v_l16))
    for ph in range(7):
        k.wait_tag('ph%d' % ph)
        k.barrier()
        for i in range(12):
            off = 12288 * ph + 1024 * i
            if off < 49152:
                k.e('ds_read_b128', v(v_w + 4 * i, 4), v(v_l16), mods='offset:%d' % off)
            else:
                k.e('ds_read_b128', v(v_w + 4 * i, 4), v(v_a), mods='offset:%d' % (off - 49152))
        for i in range(4):
            ks = 4 * ph + i
            for p in range(3):
                c = v(v_acc + 16 * p, 16) if ks else '0'
                k.e(MF32, v(v_acc + 16 * p, 16), v(v_w + 4 * (3 * i + p), 4), v(v_x + 4 * ks, 4), c)
    tmp = v_x
    v_kb = tmp
    v_qb = tmp + 8
    v_vb = tmp + 16
    v_pk = tmp + 24
    v_pq = tmp + 40
    v_sc = tmp + 56
    v_o1 = tmp + 80
    v_o2 = tmp + 96
    for i in range(8):
        k.e('v_cvt_pk_bf16_f32', v(v_kb + i), v(v_acc + 2 * i), v(v_acc + 2 * i + 1))
    for i in range(8):
        k.e('v_cvt_pk_bf16_f32', v(v_qb + i), v(v_acc + 32 + 2 * i), v(v_acc + 32 + 2 * i + 1))
    for u in range(2):
        k.e(MF32, v(v_pk, 16), v(v_phi + 4 * u, 4), v(v_kb + 4 * u, 4), v(v_pk, 16) if u else '0')
    for u in range(2):
        k.e(MF32, v(v_pq, 16), v(v_phi + 4 * u, 4), v(v_qb + 4 * u, 4), v(v_pq, 16) if u else '0')
    for i in range(8):
        k.e('v_cvt_pk_bf16_f32', v(v_vb + i), v(v_acc + 16 + 2 * i), v(v_acc + 16 + 2 * i + 1))
    k.e('v_mov_b32', v(v_t), '0x3f80')
    k.e('v_cndmask_b32', v(v_vb + 6), v(v_t), v(v_vb + 6), 'vcc')
    k.e('s_lshl_b32', s(s_t), s(s_w), 5)
    k.e('v_add_u32', v(v_t), s(s_t), v(v_row))
    k.e('v_mul_u32_u24', v(v_a), 72, v(v_t))
    k.e('v_lshl_add_u32', v(v_a), v(v_hi), 3, v(v_a))
    k.e('v_add_u32', v(v_a), L_V, v(v_a))
    k.e('v_mul_u32_u24', v(v_b), 136, v(v_t))
    k.e('v_lshl_add_u32', v(v_b), v(v_hi), 3, v(v_b))
    k.e('v_add_u32', v(v_b), L_PHIK, v(v_b))
    for g in range(4):
        k.e('ds_write_b64', v(v_a), v(v_vb + 2 * g, 2), mods='offset:%d' % (16 * g))
    softmax_pm(k, v_pk, v_o1, v_o1 + 8, v_sc, v_mask, s_l2e)
    for p in range(2):
        for g in range(4):
            k.e('ds_write_b64', v(v_b), v(v_o1 + 8 * p + 2 * g, 2), mods='offset:%d' % (64 * p + 16 * g))
    softmax_pm(k, v_pq, v_o2, v_o2 + 8, v_sc, v_mask, s_l2e)
    k.e('s_lshl_b32', s(s_off), s(s_T), 4)
    k.e('s_add_u32', s(s_off), s(s_off), s(s_hd))
    k.e('s_lshl_b32', s(s_off), s(s_off), 12)
    k.e('s_add_u32', s(s_off), s(s_off), hex(PHIQ))
    for f in range(4):
        k.e('buffer_store_dwordx4', v(v_o2 + 4 * f, 4), v(v_l16), s(S_WS, 4), s(s_off), mods='offen offset:%d' % (1024 * f))
    k.barrier()
    v_af = v_w
    v_bf = v_w + 16
    v_kv = v_acc
    k.e('v_lshrrev_b32', v(v_t), 4, v(v_lane))
    k.e('v_bfe_u32', v(v_a), v(v_lane), 2, 2)
    k.e('v_lshl_add_u32', v(v_t), v(v_t), 3, v(v_a))
    k.e('v_and_b32', v(v_row), 3, v(v_lane))
    k.e('v_mul_u32_u24', v(v_a), 136, v(v_t))
    k.e('v_lshl_add_u32', v(v_a), v(v_row), 3, v(v_a))
    k.e('s_lshl_b32', s(s_t), s(s_w), 5)
    k.e('s_add_u32', s(s_t), s(s_t), L_PHIK)
    k.e('v_add_u32', v(v_a), s(s_t), v(v_a))
    k.e('v_mul_u32_u24', v(v_b), 72, v(v_t))
    k.e('v_lshl_add_u32', v(v_b), v(v_row), 3, v(v_b))
    k.e('v_add_u32', v(v_b), L_V, v(v_b))
    for kk in range(4):
        for t in range(2):
            k.e('ds_read_b64_tr_b16', v(v_af + 4 * kk + 2 * t, 2), v(v_a), mods='offset:%d' % ((32 * kk + 4 * t) * 136))
        for dt in range(2):
            for t in range(2):
                k.e('ds_read_b64_tr_b16', v(v_bf + 16 * dt + 4 * kk + 2 * t, 2), v(v_b), mods='offset:%d' % ((32 * kk + 4 * t) * 72 + 32 * dt))
    for kk in range(4):
        for dt in range(2):
            k.e(MF16, v(v_kv + 4 * dt, 4), v(v_af + 4 * kk, 4), v(v_bf + 16 * dt + 4 * kk, 4), v(v_kv + 4 * dt, 4) if kk else '0')
    k.e('v_and_b32', v(v_a), 15, v(v_lane))
    k.e('v_bfe_u32', v(v_t), v(v_lane), 4, 1)
    k.e('v_lshl_add_u32', v(v_a), v(v_t), 5, v(v_a))
    k.e('v_lshlrev_b32', v(v_a), 5, v(v_a))
    k.e('v_lshrrev_b32', v(v_t), 5, v(v_lane))
    k.e('v_lshl_add_u32', v(v_a), v(v_t), 4, v(v_a))
    k.e('s_lshl_b32', s(s_off), s(s_hd), 4)
    k.e('s_add_u32', s(s_off), s(s_off), s(s_rb))
    k.e('s_lshl_b32', s(s_off), s(s_off), 13)
    k.e('s_lshl_b32', s(s_t), s(s_w), 11)
    k.e('s_add_u32', s(s_off), s(s_off), s(s_t))
    k.e('s_add_u32', s(s_off), s(s_off), hex(KVP))
    for dt in range(2):
        k.e('buffer_store_dwordx4', v(v_kv + 4 * dt, 4), v(v_a), s(S_WS, 4), s(s_off), mods='offen offset:%d' % (512 * dt))
    k.place(L_end, pad=False)
    k.e('s_endpgm')
    return k


def gen_k1b():
    k = Kernel('attn_kernel', lds=4096, grid=256, block=256)
    k._snext = 4
    S_WS = k.salloc(4, 4)
    S_T = k.salloc(2, 2)
    s_rb, s_hd, s_w, s_t, s_off, s_T = [k.salloc() for _ in range(6)]
    k._vnext = 1
    v_lane, v_l16, v_t, v_t32, v_t16, v_den = [k.valloc() for _ in range(6)]
    v_p = k.valloc(128, 4)
    v_q = k.valloc(16, 4)
    v_kv = k.valloc(16, 4)
    v_acc = k.valloc(16, 4)
    L_end = k.label()
    k.e('s_cmp_ge_u32', 's2', 256)
    k.e('s_cbranch_scc1', L_end)
    k.e('s_load_dwordx2', s(S_T, 2), 's[0:1]', KA_WS)
    k.e('v_lshrrev_b32', v(v_t), 6, 'v0')
    k.e('v_and_b32', v(v_lane), 63, 'v0')
    k.e('v_readfirstlane_b32', s(s_w), v(v_t))
    k.e('v_lshlrev_b32', v(v_l16), 4, v(v_lane))
    k.e('v_lshlrev_b32', v(v_t32), 5, 'v0')
    k.e('v_lshlrev_b32', v(v_t16), 4, 'v0')
    rb_hd_decode(k, s_rb, s_hd, s_t)
    k.e('s_lshl_b32', s(s_T), s(s_rb), 2)
    k.e('s_add_u32', s(s_T), s(s_T), s(s_w))
    make_srd(k, S_WS, S_T, WS_USED)
    k.e('s_lshl_b32', s(s_t), s(s_hd), 17)
    k.e('s_add_u32', s(s_t), s(s_t), hex(KVP))
    for r in range(16):
        k.e('s_add_u32', s(s_off), s(s_t), 8192 * r)
        for h in range(2):
            k.e('buffer_load_dwordx4', v(v_p + 8 * r + 4 * h, 4), v(v_t32), s(S_WS, 4), s(s_off), mods='offen offset:%d' % (16 * h))
    k.e('s_lshl_b32', s(s_off), s(s_T), 4)
    k.e('s_add_u32', s(s_off), s(s_off), s(s_hd))
    k.e('s_lshl_b32', s(s_off), s(s_off), 12)
    k.e('s_add_u32', s(s_off), s(s_off), hex(PHIQ))
    for f in range(4):
        k.e('buffer_load_dwordx4', v(v_q + 4 * f, 4), v(v_l16), s(S_WS, 4), s(s_off), mods='offen offset:%d' % (1024 * f))
    for r in range(1, 16):
        for j in range(8):
            k.e('v_add_f32', v(v_p + j), v(v_p + j), v(v_p + 8 * r + j))
    for j in range(4):
        k.e('v_cvt_pk_bf16_f32', v(v_p + 8 + j), v(v_p + 2 * j), v(v_p + 2 * j + 1))
    k.e('ds_write_b128', v(v_t16), v(v_p + 8, 4))
    k.barrier()
    for f in range(4):
        k.e('ds_read_b128', v(v_kv + 4 * f, 4), v(v_l16), mods='offset:%d' % (1024 * f))
    for f in range(4):
        k.e(MF32, v(v_acc, 16), v(v_kv + 4 * f, 4), v(v_q + 4 * f, 4), v(v_acc, 16) if f else '0')
    k.e('v_mov_b32', v(v_t), v(v_acc + 12))
    k.e('v_mov_b32', v(v_den), v(v_acc + 12))
    k.e('v_permlane32_swap_b32', v(v_t), v(v_den))
    bf16_round(k, v_den, v_den)
    k.e('v_add_f32', v(v_den), f32(1e-6), v(v_den))
    bf16_round(k, v_den, v_den)
    k.e('v_rcp_f32', v(v_den), v(v_den))
    for i in range(16):
        k.e('v_mul_f32', v(v_acc + i), v(v_acc + i), v(v_den))
    for i in range(8):
        k.e('v_cvt_pk_bf16_f32', v(v_kv + i), v(v_acc + 2 * i), v(v_acc + 2 * i + 1))
    k.e('s_lshl_b32', s(s_off), s(s_T), 4)
    k.e('s_add_u32', s(s_off), s(s_off), s(s_hd))
    k.e('s_lshl_b32', s(s_off), s(s_off), 11)
    k.e('s_add_u32', s(s_off), s(s_off), hex(OF))
    for u in range(2):
        k.e('buffer_store_dwordx4', v(v_kv + 4 * u, 4), v(v_l16), s(S_WS, 4), s(s_off), mods='offen offset:%d' % (1024 * u))
    k.place(L_end, pad=False)
    k.e('s_endpgm')
    return k


def gen_splitk(name, nks, WB, AB, depth, final):
    per = nks // 4
    k = Kernel(name, lds=49152, grid=224, block=256)
    k._snext = 4
    S_WS = k.salloc(4, 4)
    S_IO = k.salloc(4, 4)
    S_T = k.salloc(2, 2)
    S_T2 = k.salloc(2, 2)
    s_rt, s_ct, s_w, s_t, s_off, s_T, s_C = [k.salloc() for _ in range(7)]
    s_ab = [k.salloc() for _ in range(4)]
    k._vnext = 1
    v_lane, v_l16, v_t, v_row, v_hi, v_io, v_s1, v_s2 = [k.valloc() for _ in range(8)]
    v_res = k.valloc(8, 4)
    v_acc = k.valloc(64, 4)
    v_f = k.valloc(16 * depth, 4)
    L_end = k.label()
    k.e('s_cmp_ge_u32', 's2', 224)
    k.e('s_cbranch_scc1', L_end)
    k.e('s_load_dwordx2', s(S_T, 2), 's[0:1]', KA_WS)
    k.e('s_load_dwordx2', s(S_T2, 2), 's[0:1]', KA_OUT if final else KA_X)
    k.e('v_lshrrev_b32', v(v_t), 6, 'v0')
    k.e('v_and_b32', v(v_lane), 63, 'v0')
    k.e('v_readfirstlane_b32', s(s_w), v(v_t))
    k.e('v_lshlrev_b32', v(v_l16), 4, v(v_lane))
    k.e('s_and_b32', s(s_rt), 's2', 7)
    k.e('s_lshl_b32', s(s_rt), s(s_rt), 2)
    k.e('s_bfe_u32', s(s_t), 's2', hex((2 << 16) | 3))
    k.e('s_add_u32', s(s_rt), s(s_rt), s(s_t))
    k.e('s_lshr_b32', s(s_ct), 's2', 5)
    k.e('s_lshr_b32', s(s_t), s(s_w), 1)
    k.e('s_lshl_b32', s(s_C), s(s_ct), 1)
    k.e('s_add_u32', s(s_C), s(s_C), s(s_t))
    k.e('s_and_b32', s(s_t), s(s_w), 1)
    k.e('s_lshl_b32', s(s_T), s(s_rt), 1)
    k.e('s_add_u32', s(s_T), s(s_T), s(s_t))
    k.e('s_mul_i32', s(s_t), s(s_w), per * 1024)
    for i, (src, base) in enumerate(((s_C, WB), (s_C, WB), (s_T, AB), (s_T, AB))):
        if i & 1:
            k.e('s_xor_b32', s(s_off), s(src), 1)
            k.e('s_mul_i32', s(s_ab[i]), s(s_off), nks * 1024)
        else:
            k.e('s_mul_i32', s(s_ab[i]), s(src), nks * 1024)
        k.e('s_add_u32', s(s_ab[i]), s(s_ab[i]), s(s_t))
        k.e('s_add_u32', s(s_ab[i]), s(s_ab[i]), hex(base))
    make_srd(k, S_WS, S_T, WS_USED)
    make_srd(k, S_IO, S_T2, 2048 * 896)

    def issue(ks):
        slot = ks % depth
        for i in range(4):
            k.e('buffer_load_dwordx4', v(v_f + 16 * slot + 4 * i, 4), v(v_l16), s(S_WS, 4), s(s_ab[i]), mods='offen offset:%d' % (1024 * (ks & 3)))
        if (ks & 3) == 3:
            for i in range(4):
                k.e('s_add_u32', s(s_ab[i]), s(s_ab[i]), 4096)

    for ks in range(min(depth, per)):
        issue(ks)
    k.e('v_and_b32', v(v_row), 31, v(v_lane))
    k.e('v_lshrrev_b32', v(v_hi), 5, v(v_lane))
    k.e('s_lshl_b32', s(s_t), s(s_T), 5)
    k.e('v_add_u32', v(v_t), s(s_t), v(v_row))
    k.e('v_mul_u32_u24', v(v_io), 896, v(v_t))
    k.e('s_lshl_b32', s(s_t), s(s_C), 6)
    k.e('v_add_u32', v(v_io), s(s_t), v(v_io))
    if not final:
        k.e('v_lshl_add_u32', v(v_io), v(v_hi), 3, v(v_io))
        for g in range(4):
            k.e('buffer_load_dwordx2', v(v_res + 2 * g, 2), v(v_io), s(S_IO, 4), 0, mods='offen offset:%d' % (16 * g))
    else:
        k.e('v_lshl_add_u32', v(v_io), v(v_hi), 4, v(v_io))
        k.e('s_mul_i32', s(s_off), s(s_T), 28)
        k.e('s_lshl_b32', s(s_t), s(s_C), 1)
        k.e('s_add_u32', s(s_off), s(s_off), s(s_t))
        k.e('s_lshl_b32', s(s_off), s(s_off), 10)
        k.e('s_add_u32', s(s_off), s(s_off), hex(HF))
        for u in range(2):
            k.e('buffer_load_dwordx4', v(v_res + 4 * u, 4), v(v_l16), s(S_WS, 4), s(s_off), mods='offen offset:%d' % (1024 * u))
    for ks in range(per):
        slot = ks % depth
        fb = v_f + 16 * slot
        for i in range(4):
            k.e(MF32, v(v_acc + 16 * i, 16), v(fb + 4 * (i >> 1), 4), v(fb + 8 + 4 * (i & 1), 4), v(v_acc + 16 * i, 16) if ks else '0')
        if ks + depth < per:
            issue(ks + depth)
    for i in range(1, 4):
        k.e('s_xor_b32', s(s_t), s(s_w), i)
        k.e('s_mul_i32', s(s_t), s(s_t), 12288)
        k.e('s_add_u32', s(s_t), s(s_t), 4096 * (i - 1))
        k.e('v_add_u32', v(v_t), s(s_t), v(v_l16))
        for g in range(4):
            k.e('ds_write_b128', v(v_t), v(v_acc + 16 * i + 4 * g, 4), mods='offset:%d' % (1024 * g))
    k.barrier()
    k.e('s_mul_i32', s(s_t), s(s_w), 12288)
    k.e('v_add_u32', v(v_t), s(s_t), v(v_l16))
    for i in range(3):
        for g in range(4):
            k.e('ds_read_b128', v(v_f + 16 * i + 4 * g, 4), v(v_t), mods='offset:%d' % (4096 * i + 1024 * g))
    for i in range(3):
        for r in range(16):
            k.e('v_add_f32', v(v_acc + r), v(v_acc + r), v(v_f + 16 * i + r))
    v_y = v_f
    v_o = v_f + 16
    for i in range(8):
        k.e('v_cvt_pk_bf16_f32', v(v_y + i), v(v_acc + 2 * i), v(v_acc + 2 * i + 1))
    for i in range(8):
        k.e('v_lshlrev_b32', v(v_acc + 2 * i), 16, v(v_y + i))
        k.e('v_and_b32', v(v_acc + 2 * i + 1), '0xffff0000', v(v_y + i))
        k.e('v_lshlrev_b32', v(v_acc + 16 + 2 * i), 16, v(v_res + i))
        k.e('v_and_b32', v(v_acc + 16 + 2 * i + 1), '0xffff0000', v(v_res + i))
    for r in range(16):
        k.e('v_add_f32', v(v_acc + r), v(v_acc + r), v(v_acc + 16 + r))
    for i in range(8):
        k.e('v_cvt_pk_bf16_f32', v(v_o + i), v(v_acc + 2 * i), v(v_acc + 2 * i + 1))
    if not final:
        k.e('s_mul_i32', s(s_off), s(s_T), 28)
        k.e('s_lshl_b32', s(s_t), s(s_C), 1)
        k.e('s_add_u32', s(s_off), s(s_off), s(s_t))
        k.e('s_lshl_b32', s(s_off), s(s_off), 10)
        k.e('s_add_u32', s(s_off), s(s_off), hex(HF))
        for u in range(2):
            k.e('buffer_store_dwordx4', v(v_o + 4 * u, 4), v(v_l16), s(S_WS, 4), s(s_off), mods='offen offset:%d' % (1024 * u))
        s_ones = s_ab[0]
        k.e('s_mov_b32', s(s_ones), '0x3f803f80')
        k.e('v_mov_b32', v(v_s1), 0)
        k.e('v_mov_b32', v(v_s2), 0)
        for i in range(8):
            k.e('v_dot2_f32_bf16', v(v_s1), v(v_o + i), s(s_ones), v(v_s1))
        for i in range(8):
            k.e('v_dot2_f32_bf16', v(v_s2), v(v_o + i), v(v_o + i), v(v_s2))
        swap_op(k, 'v_add_f32', v_s1, v_t)
        swap_op(k, 'v_add_f32', v_s2, v_t)
        k.e('v_mov_b32', v(v_acc), v(v_s1))
        k.e('v_mov_b32', v(v_acc + 1), v(v_s2))
        k.e('v_lshlrev_b32', v(v_t), 3, v(v_row))
        k.e('v_mov_b32', v(v_io), hex(OOB))
        k.e('v_cmp_eq_u32', 'vcc', 0, v(v_hi))
        k.e('v_cndmask_b32', v(v_t), v(v_io), v(v_t), 'vcc')
        k.e('s_lshl_b32', s(s_off), s(s_C), 14)
        k.e('s_lshl_b32', s(s_t), s(s_T), 8)
        k.e('s_add_u32', s(s_off), s(s_off), s(s_t))
        k.e('s_add_u32', s(s_off), s(s_off), hex(STATS))
        k.e('buffer_store_dwordx2', v(v_acc, 2), v(v_t), s(S_WS, 4), s(s_off), mods='offen')
    else:
        for gp in range(2):
            b = v_o + 4 * gp
            k.e('v_permlane32_swap_b32', v(b), v(b + 2))
            k.e('v_permlane32_swap_b32', v(b + 1), v(b + 3))
        for gp in range(2):
            k.e('buffer_store_dwordx4', v(v_o + 4 * gp, 4), v(v_io), s(S_IO, 4), 0, mods='offen offset:%d' % (32 * gp))
    k.place(L_end, pad=False)
    k.e('s_endpgm')
    return k


def gen_k3():
    NSLOT = 5
    L_CS = NSLOT * 28672
    k = Kernel('gateup_kernel', lds=L_CS + 896, grid=256, block=256)
    k._snext = 4
    S_WS = k.salloc(4, 4)
    S_T = k.salloc(2, 2)
    s_rb, s_fg, s_w, s_t, s_wb, s_off, s_T, s_lb, s_c0, s_c1, s_hh = [k.salloc() for _ in range(11)]
    k._vnext = 1
    v_lane, v_l16, v_t, v_row, v_hi, v_a, v_b, v_rs, v_nm, v_csa = [k.valloc() for _ in range(10)]
    v_ad = [k.valloc() for _ in range(3)]
    v_h = k.valloc(112, 4)
    v_w = k.valloc(32, 4)
    v_acc = k.valloc(16, 4)
    v_cs = k.valloc(16, 4)
    v_st = k.valloc(16, 4)
    v_e = k.valloc(16, 4)
    v_o = k.valloc(4, 4)
    L_end = k.label()
    k.e('s_cmp_ge_u32', 's2', 256)
    k.e('s_cbranch_scc1', L_end)
    k.e('s_load_dwordx2', s(S_T, 2), 's[0:1]', KA_WS)
    k.e('v_lshrrev_b32', v(v_t), 6, 'v0')
    k.e('v_and_b32', v(v_lane), 63, 'v0')
    k.e('v_readfirstlane_b32', s(s_w), v(v_t))
    k.e('v_lshlrev_b32', v(v_l16), 4, v(v_lane))
    k.e('s_and_b32', s(s_rb), 's2', 1)
    k.e('s_lshl_b32', s(s_rb), s(s_rb), 3)
    k.e('s_bfe_u32', s(s_t), 's2', hex((3 << 16) | 3))
    k.e('s_add_u32', s(s_rb), s(s_rb), s(s_t))
    k.e('s_bfe_u32', s(s_fg), 's2', hex((2 << 16) | 1))
    k.e('s_lshl_b32', s(s_fg), s(s_fg), 2)
    k.e('s_lshr_b32', s(s_t), 's2', 6)
    k.e('s_add_u32', s(s_fg), s(s_fg), s(s_t))
    k.e('s_lshl_b32', s(s_T), s(s_rb), 2)
    k.e('s_add_u32', s(s_T), s(s_T), s(s_w))
    k.e('s_mul_i32', s(s_lb), s(s_w), 7168)
    k.e('s_mul_i32', s(s_wb), s(s_fg), 7 * 28672)
    k.e('s_add_u32', s(s_wb), s(s_wb), s(s_lb))
    k.e('s_add_u32', s(s_wb), s(s_wb), hex(WGU))
    make_srd(k, S_WS, S_T, WS_USED)

    def dma(j):
        slot = j % NSLOT
        for half, cnt in ((0, 4), (1, 3)):
            k.e('s_add_u32', 'm0', s(s_lb), slot * 28672 + 4096 * half)
            k.e('s_add_u32', s(s_off), s(s_wb), j * 28672 + 4096 * half)
            for i in range(cnt):
                k.e('buffer_load_dwordx4', v(v_l16), s(S_WS, 4), s(s_off), mods='offen offset:%d lds' % (1024 * i), tag='t%d' % j)

    dma(0)
    k.e('v_and_b32', v(v_row), 31, v(v_lane))
    k.e('v_lshrrev_b32', v(v_hi), 5, v(v_lane))
    k.e('v_mul_u32_u24', v(v_a), 7 * 16384, v(v_hi))
    k.e('v_lshl_add_u32', v(v_a), v(v_row), 3, v(v_a))
    k.e('s_lshl_b32', s(s_t), s(s_T), 8)
    k.e('s_add_u32', s(s_t), s(s_t), hex(STATS))
    for i in range(7):
        k.e('s_add_u32', s(s_off), s(s_t), 16384 * i)
        k.e('buffer_load_dwordx2', v(v_st + 2 * i, 2), v(v_a), s(S_WS, 4), s(s_off), mods='offen')
    k.e('v_lshlrev_b32', v(v_b), 2, 'v0')
    k.e('v_mov_b32', v(v_t), hex(OOB))
    k.e('v_cmp_gt_u32', 'vcc', 224, 'v0')
    k.e('v_cndmask_b32', v(v_a), v(v_t), v(v_b), 'vcc')
    k.e('s_mul_i32', s(s_t), s(s_fg), 896)
    k.e('s_add_u32', s(s_t), s(s_t), hex(CS))
    for q in range(4):
        k.e('s_add_u32', s(s_off), s(s_t), 112 * 128 * q)
        k.e('buffer_load_dword', v(v_cs + q), v(v_a), s(S_WS, 4), s(s_off), mods='offen')
    k.e('s_mul_i32', s(s_t), s(s_T), 28672)
    k.e('s_add_u32', s(s_t), s(s_t), hex(HF))
    for ks in range(28):
        if (ks & 3) == 0:
            k.e('s_add_u32', s(s_off), s(s_t), 1024 * ks)
        k.e('buffer_load_dwordx4', v(v_h + 4 * ks, 4), v(v_l16), s(S_WS, 4), s(s_off), mods='offen offset:%d' % (1024 * (ks & 3)))
    dma(1)
    dma(2)
    k.e('v_add_f32', v(v_cs), v(v_cs), v(v_cs + 1))
    k.e('v_add_f32', v(v_cs + 2), v(v_cs + 2), v(v_cs + 3))
    k.e('v_add_f32', v(v_cs), v(v_cs), v(v_cs + 2))
    k.e('s_and_saveexec_b64', s(S_T, 2), 'vcc')
    k.e('v_add_u32', v(v_b), L_CS, v(v_b))
    k.e('ds_write_b32', v(v_b), v(v_cs))
    k.e('s_mov_b64', 'exec', s(S_T, 2))
    for i in range(1, 7):
        k.e('v_add_f32', v(v_st), v(v_st), v(v_st + 2 * i))
        k.e('v_add_f32', v(v_st + 1), v(v_st + 1), v(v_st + 2 * i + 1))
    swap_op(k, 'v_add_f32', v_st, v_t)
    swap_op(k, 'v_add_f32', v_st + 1, v_t)
    k.e('v_mul_f32', v(v_nm), f32(1.0 / 448), v(v_st))
    k.e('v_mul_f32', v(v_rs), f32(1.0 / 448), v(v_st + 1))
    k.e('v_fma_f32', v(v_rs), '-' + v(v_nm), v(v_nm), v(v_rs))
    k.e('v_max_f32', v(v_rs), 0, v(v_rs))
    bf16_round(k, v_rs, v_rs)
    k.e('v_add_f32', v(v_rs), f32(1e-5), v(v_rs))
    bf16_round(k, v_rs, v_rs)
    k.e('v_sqrt_f32', v(v_rs), v(v_rs))
    bf16_round(k, v_rs, v_rs)
    k.e('v_rcp_f32', v(v_rs), v(v_rs))
    bf16_round(k, v_nm, v_nm)
    k.e('v_mul_f32', v(v_nm), v(v_nm), v(v_rs))
    k.e('v_sub_f32', v(v_nm), 0, v(v_nm))
    dma(3)
    dma(4)
    k.e('v_lshlrev_b32', v(v_csa), 4, v(v_hi))
    k.e('v_add_u32', v(v_csa), L_CS, v(v_csa))
    for i in range(3):
        k.e('v_add_u32', v(v_ad[i]), 57344 * i, v(v_l16))
    c0 = -2.0 * 0.7978845608028654 * LOG2E
    k.e('s_mov_b32', s(s_c0), f32(c0))
    k.e('s_mov_b32', s(s_c1), f32(c0 * 0.044715))
    k.e('s_mul_i32', s(s_hh), s(s_T), 112)
    k.e('s_mul_i32', s(s_t), s(s_fg), 7)
    k.e('s_add_u32', s(s_hh), s(s_hh), s(s_t))
    k.e('s_lshl_b32', s(s_hh), s(s_hh), 10)
    k.e('s_add_u32', s(s_hh), s(s_hh), hex(HH))
    for j in range(7):
        slot = j % NSLOT
        k.wait_tag('t%d' % j)
        k.barrier()
        if j >= 1 and j - 1 + NSLOT < 7:
            dma(j - 1 + NSLOT)
        ad = v_ad[slot >> 1]
        base = (slot & 1) * 28672
        for g in range(4):
            k.e('ds_read_b128', v(v_cs + 4 * g, 4), v(v_csa), mods='offset:%d' % (128 * j + 32 * g))
        NB = 8
        for ks in range(min(NB, 28)):
            k.e('ds_read_b128', v(v_w + 4 * (ks % NB), 4), v(ad), mods='offset:%d' % (base + 1024 * ks))
        for ks in range(28):
            k.e(MF32, v(v_acc, 16), v(v_w + 4 * (ks % NB), 4), v(v_h + 4 * ks, 4), v(v_acc, 16) if ks else '0')
            if ks + NB < 28:
                k.e('ds_read_b128', v(v_w + 4 * (ks % NB), 4), v(ad), mods='offset:%d' % (base + 1024 * (ks + NB)))
        for r in range(16):
            k.e('v_mul_f32', v(v_cs + r), v(v_cs + r), v(v_nm))
        for r in range(16):
            k.e('v_fma_f32', v(v_cs + r), v(v_acc + r), v(v_rs), v(v_cs + r))
        for r in range(8):
            k.e('v_mul_f32', v(v_e + r), v(v_cs + r), v(v_cs + r))
        k.e('v_mov_b32', v(v_e + 8), s(s_c0))
        for r in range(8):
            g_, e_ = v_cs + r, v_e + r
            k.e('v_fma_f32', v(e_), v(e_), s(s_c1), v(v_e + 8))
            k.e('v_mul_f32', v(e_), v(e_), v(g_))
        for r in range(8):
            k.e('v_exp_f32', v(v_e + r), v(v_e + r))
        for r in range(8):
            k.e('v_add_f32', v(v_e + r), '1.0', v(v_e + r))
        for r in range(8):
            k.e('v_rcp_f32', v(v_e + r), v(v_e + r))
        for r in range(8):
            k.e('v_mul_f32', v(v_cs + r), v(v_cs + r), v(v_cs + 8 + r))
        for r in range(8):
            k.e('v_mul_f32', v(v_cs + r), v(v_cs + r), v(v_e + r))
        for i in range(4):
            k.e('v_cvt_pk_bf16_f32', v(v_o + i), v(v_cs + 2 * i), v(v_cs + 2 * i + 1))
        k.e('s_add_u32', s(s_off), s(s_hh), 1024 * j)
        k.e('buffer_store_dwordx4', v(v_o, 4), v(v_l16), s(S_WS, 4), s(s_off), mods='offen')
    k.place(L_end, pad=False)
    k.e('s_endpgm')
    return k


def main():
    ref = open(os.path.join(os.path.dirname(os.path.abspath(__file__)), '..', 'cdna_kernels', NAME + '.s.ref')).read().splitlines()
    header = [l for l in ref if l.startswith(';') and '@launch' not in l and 'Override launch' not in l and 'grid=ceil' not in l]
    ks = [gen_k0(), gen_k1a(), gen_k1b(), gen_splitk('wo_kernel', 32, WO, OF, 8, False), gen_k3(),
          gen_splitk('down_kernel', 112, WD, HH, 10, True)]
    txt = build_file(header, ks, ks)
    out = sys.argv[1] if len(sys.argv) > 1 else os.path.join(os.path.dirname(os.path.abspath(__file__)), '..', 'cdna_kernels', NAME + '.s')
    open(out, 'w').write(txt)
    for k in ks:
        print(k.name, 'vgpr', k.maxv, 'sgpr', k.maxs, 'ins', len(k.ins), 'lds', k.lds)


if __name__ == '__main__':
    main()
```

```python
import re

_REG_RE = re.compile(r'^(-?)(?:abs\()?([vsa])(?:(\d+)|\[(\d+):(\d+)\])\)?$')

TRANS = ('v_exp_f32', 'v_log_f32', 'v_rcp_f32', 'v_rsq_f32', 'v_sqrt_f32', 'v_sin_f32', 'v_cos_f32')


def regs_of(opnd):
    o = opnd.strip()
    if o in ('vcc',):
        return {('s', 'vcc')}
    if o in ('exec',):
        return {('s', 'exec')}
    if o == 'm0':
        return {('s', 'm0')}
    m = _REG_RE.match(o)
    if not m:
        return set()
    f = m.group(2)
    if m.group(3) is not None:
        return {(f, int(m.group(3)))}
    return {(f, i) for i in range(int(m.group(4)), int(m.group(5)) + 1)}


def v(i, n=1):
    return 'v%d' % i if n == 1 else 'v[%d:%d]' % (i, i + n - 1)


def s(i, n=1):
    return 's%d' % i if n == 1 else 's[%d:%d]' % (i, i + n - 1)


def a(i, n=1):
    return 'a%d' % i if n == 1 else 'a[%d:%d]' % (i, i + n - 1)


class Ins:
    __slots__ = ('text', 'op', 'wr', 'rd', 'kind', 'passes', 'srcc', 'states', 'data', 'wide', 'dpp', 'ab')

    def __init__(self, text, op, wr, rd, kind):
        self.text, self.op, self.wr, self.rd, self.kind = text, op, wr, rd, kind
        self.passes = 0
        self.srcc = set()
        self.ab = set()
        self.states = 1
        self.data = set()
        self.wide = False
        self.dpp = False


class Kernel:
    def __init__(self, name, lds=0, grid=1, block=256):
        self.name, self.lds, self.grid, self.block = name, lds, grid, block
        self.ins = []
        self.vmq = []
        self.lgq = []
        self.maxv = 0
        self.maxs = 0
        self.maxa = -1
        self.nlabel = 0
        self._vnext = 0
        self._snext = 0
        self.hist = []

    def valloc(self, n=1, align=1):
        b = (self._vnext + align - 1) // align * align
        self._vnext = b + n
        assert self._vnext <= 256, 'out of VGPRs'
        return b

    def salloc(self, n=1, align=1):
        b = (self._snext + align - 1) // align * align
        self._snext = b + n
        assert self._snext <= 100, 'out of SGPRs'
        return b

    def aalloc(self, n=1, align=1):
        b = (getattr(self, '_anext', 0) + align - 1) // align * align
        self._anext = b + n
        assert self._anext <= 256, 'out of AGPRs'
        return b

    def vmark(self):
        return self._vnext

    def vrelease(self, mark):
        self._vnext = mark

    def _classify(self, op, ops, mods):
        wr, rd = set(), set()
        R = [regs_of(o) for o in ops]
        ins = None
        if op == 'v_accvgpr_read_b32' or op == 'v_accvgpr_write_b32' or op == 'v_accvgpr_mov_b32':
            kind = 'valu'
            wr = R[0]
            rd = R[1]
        elif op.startswith('v_mfma'):
            kind = 'mfma'
            wr = R[0]
            rd = R[1] | R[2] | R[3]
        elif op.startswith('v_'):
            kind = 'valu'
            if op.startswith('v_cmp'):
                wr = R[0]
                rd = set().union(*R[1:])
            elif op.startswith('v_permlane') and 'swap' in op:
                wr = R[0] | R[1]
                rd = R[0] | R[1]
            elif op in ('v_add_co_u32', 'v_sub_co_u32', 'v_subrev_co_u32', 'v_addc_co_u32', 'v_subb_co_u32'):
                wr = R[0] | R[1]
                rd = set().union(*R[2:])
            elif op == 'v_nop':
                pass
            else:
                wr = R[0]
                rd = set().union(*R[1:]) if len(R) > 1 else set()
                if op.startswith('v_fmac') or op.startswith('v_dot2c') or op.startswith('v_pk_fmac') or op.startswith('v_writelane'):
                    rd |= R[0]
                if op.startswith('v_cndmask') and len(ops) == 3:
                    rd |= {('s', 'vcc')}
                if '_dpp' in op or 'sdwa' in op:
                    rd |= R[0]
        elif op.startswith('ds_'):
            kind = 'ds'
            if op.startswith('ds_read') or op.startswith('ds_bpermute') or op.startswith('ds_permute') or op.startswith('ds_swizzle') or '_rtn' in op:
                wr = R[0]
                rd = set().union(*R[1:])
            else:
                rd = set().union(*R)
        elif op.startswith('buffer_') or op.startswith('global_'):
            kind = 'vmem'
            is_lds = bool(re.search(r'\blds\b', mods))
            if op in ('buffer_wbl2', 'buffer_inv'):
                pass
            elif op.startswith('buffer_load'):
                if is_lds:
                    rd = set().union(*R) | {('s', 'm0')}
                else:
                    wr = R[0]
                    rd = set().union(*R[1:])
            elif op.startswith('buffer_store'):
                rd = set().union(*R)
            elif op.startswith('buffer_atomic'):
                rd = set().union(*R)
                if re.search(r'\bsc0\b', mods):
                    wr = R[0]
            elif op.startswith('global_load'):
                wr = R[0]
                rd = set().union(*R[1:])
            elif op.startswith('global_store'):
                rd = set().union(*R)
            elif op.startswith('global_atomic'):
                if re.search(r'\bsc0\b', mods):
                    wr = R[0]
                    rd = set().union(*R[1:])
                else:
                    rd = set().union(*R)
            else:
                raise ValueError(op)
        elif op.startswith('s_load') or op in ('s_memtime', 's_memrealtime'):
            kind = 'smem'
            wr = R[0]
            rd = set().union(*R[1:]) if len(R) > 1 else set()
        elif op.startswith('s_'):
            kind = 'salu'
            if op.startswith('s_cmp') or op.startswith('s_cbranch') or op in (
                    's_waitcnt', 's_barrier', 's_nop', 's_branch', 's_endpgm', 's_sleep', 's_setprio', 's_bitcmp0_b32', 's_bitcmp1_b32'):
                rd = set().union(*R) if R else set()
            else:
                wr = R[0]
                rd = set().union(*R[1:]) if len(R) > 1 else set()
                if 'saveexec' in op:
                    wr = wr | {('s', 'exec')}
                if op in ('s_addk_i32', 's_mulk_i32'):
                    rd |= R[0]
        else:
            raise ValueError('unknown op ' + op)
        text = '    ' + op + (' ' + ', '.join(ops) if ops else '') + ((' ' + mods) if mods else '')
        ins = Ins(text, op, wr, rd, kind)
        if kind == 'mfma':
            ins.passes = 8 if '32x32x16' in op else 4
            ins.srcc = R[3]
            ins.ab = R[1] | R[2]
        if kind == 'vmem' and ('store' in op) and ('x4' in op or 'x3' in op):
            ins.wide = True
            ins.data = R[0] if op.startswith('buffer') else R[1]
        if kind == 'valu' and ('_dpp' in op):
            ins.dpp = True
        if op == 's_nop':
            ins.states = int(ops[0]) + 1
        return ins

    def _need(self, p, c):
        n = 0
        isv = lambda S: {r for r in S if r[0] in 'va'}
        iss = lambda S: {r for r in S if r[0] == 's'}
        if p.kind == 'valu':
            pw = isv(p.wr)
            if pw:
                if c.kind == 'mfma' and pw & c.rd:
                    n = max(n, 2)
                if c.kind == 'valu':
                    if c.op.startswith('v_permlane') and pw & c.rd:
                        n = max(n, 2)
                    if c.dpp and pw & c.rd:
                        n = max(n, 2)
                    if c.op.startswith('v_read') and pw & c.rd:
                        n = max(n, 1)
                if p.op in TRANS and pw & c.rd:
                    n = max(n, 1)
                if p.op.startswith('v_dot'):
                    if pw & (c.rd | c.wr):
                        same_acc = (c.op == p.op) and not (pw & self._dot_ab(c))
                        if not same_acc:
                            n = max(n, 3)
                if ('sdwa' in p.op and 'dst_sel:DWORD' not in p.text) and pw & (c.rd | c.wr):
                    n = max(n, 1)
            sw = iss(p.wr)
            if sw:
                if c.kind == 'valu' and sw & c.rd:
                    n = max(n, 4 if c.op.startswith('v_readlane') or c.op.startswith('v_writelane') else 2)
                if c.kind == 'mfma' and sw & c.rd:
                    n = max(n, 2)
                if c.kind == 'vmem' and sw & c.rd:
                    n = max(n, 5)
                if c.kind in ('salu', 'smem') and sw & c.rd:
                    n = max(n, 1)
        if p.kind == 'mfma':
            big = 12 if p.passes == 8 else 8
            ovl = 10 if p.passes == 8 else 6
            war = 7 if p.passes == 8 else 3
            if c.kind == 'mfma':
                if p.wr & c.ab:
                    n = max(n, big)
                if p.wr & c.srcc:
                    if not (p.wr == c.srcc and p.passes == c.passes):
                        n = max(n, ovl)
                elif p.wr & c.wr:
                    n = max(n, ovl)
            else:
                if p.wr & (c.rd | c.wr):
                    n = max(n, big)
                if c.kind == 'valu' and p.srcc & c.wr:
                    n = max(n, war)
                if c.kind in ('ds', 'vmem') and p.srcc & c.wr:
                    n = max(n, war)
        if p.kind == 'salu' and ('s', 'm0') in p.wr and ('s', 'm0') in c.rd:
            n = max(n, 1)
        if p.kind == 'vmem' and p.wide and p.data & c.wr:
            n = max(n, 2)
        return n

    @staticmethod
    def _dot_ab(c):
        ops = c.text.strip().split(None, 1)[1].split(',')
        return regs_of(ops[1]) | regs_of(ops[2].split()[0])

    def _hazard(self, c):
        need = 0
        dist = 0
        for p in reversed(self.hist):
            r = self._need(p, c)
            if r > dist:
                need = max(need, r - dist)
            dist += p.states
            if dist >= 16:
                break
        while need > 0:
            k = min(need, 16)
            nop = self._classify('s_nop', [str(k - 1)], '')
            self.ins.append(nop)
            self.hist.append(nop)
            need -= k

    def _auto_wait(self, c):
        touch = c.rd | c.wr
        vm_n = None
        for i, (regs, tag) in enumerate(self.vmq):
            if regs & touch:
                vm_n = len(self.vmq) - 1 - i
        lg_n = None
        for i, (regs, smem) in enumerate(self.lgq):
            if regs & touch:
                lg_n = len(self.lgq) - 1 - i
        if lg_n is not None and any(sm for _, sm in self.lgq):
            lg_n = 0
        if vm_n is not None or lg_n is not None:
            self.wait(vm=vm_n, lgkm=lg_n)

    def wait(self, vm=None, lgkm=None):
        parts = []
        if vm is not None:
            vm = min(vm, 63)
            if len(self.vmq) > vm:
                parts.append('vmcnt(%d)' % vm)
                self.vmq = self.vmq[len(self.vmq) - vm:] if vm else []
        if lgkm is not None:
            lgkm = min(lgkm, 15)
            if len(self.lgq) > lgkm:
                parts.append('lgkmcnt(%d)' % lgkm)
                self.lgq = self.lgq[len(self.lgq) - lgkm:] if lgkm else []
        if parts:
            ins = Ins('    s_waitcnt ' + ' '.join(parts), 's_waitcnt', set(), set(), 'salu')
            self.ins.append(ins)
            self.hist.append(ins)

    def wait_tag(self, tag):
        last = None
        for i, (regs, t) in enumerate(self.vmq):
            if t == tag:
                last = i
        if last is not None:
            self.wait(vm=len(self.vmq) - 1 - last)

    def wait_all(self):
        ins = Ins('    s_waitcnt vmcnt(0) lgkmcnt(0)', 's_waitcnt', set(), set(), 'salu')
        self.ins.append(ins)
        self.hist.append(ins)
        self.vmq, self.lgq = [], []

    def e(self, op, *ops, mods='', tag=None):
        ops = [str(o) for o in ops]
        c = self._classify(op, ops, mods)
        if c.kind == 'vmem' and len(self.vmq) >= 60:
            self.wait(vm=59)
        self._auto_wait(c)
        self._hazard(c)
        self.ins.append(c)
        self.hist.append(c)
        if len(self.hist) > 64:
            self.hist = self.hist[-32:]
        for f, i in (c.rd | c.wr):
            if isinstance(i, int):
                if f == 'v':
                    self.maxv = max(self.maxv, i + 1)
                elif f == 's':
                    self.maxs = max(self.maxs, i + 1)
                else:
                    self.maxa = max(self.maxa, i)
        if c.kind == 'vmem':
            self.vmq.append((set(c.wr), tag))
        elif c.kind == 'ds':
            self.lgq.append((set(c.wr), False))
        elif c.kind == 'smem':
            self.lgq.append((set(c.wr), True))
        return c

    def stamp_init(self, nmax=8, only=None):
        self.stamps = []
        self.stamp_base = 100 - 2 * nmax
        self.maxs = max(self.maxs, 100)
        self.stamp_only = only
        self.stamp_idx = -1
        for r in range(self.stamp_base, 100):
            self.e('s_mov_b32', s(r), 0)

    def stamp(self, force=False):
        if getattr(self, 'stamps', None) is None:
            return
        if not force:
            self.stamp_idx += 1
            if self.stamp_only is not None and self.stamp_idx not in self.stamp_only:
                return
        r = self.stamp_base + 2 * len(self.stamps)
        assert r + 2 <= 100
        self.stamps.append(r)
        ins = Ins('    s_memrealtime s[%d:%d]' % (r, r + 1), 's_memrealtime', set(), set(), 'salu')
        self.ins.append(ins)
        self.hist.append(ins)

    def stamp_store(self, srd, base, vt, vt2, s_tmp):
        if getattr(self, 'stamps', None) is None:
            return
        self.wait_all()
        self.stamp(force=True)
        self.wait_all()
        self.e('v_lshrrev_b32', v(vt), 6, 'v0')
        self.e('v_lshlrev_b32', v(vt), 6, v(vt))
        self.e('s_mul_i32', s(s_tmp), 's2', 64 * (self.block // 64))
        self.e('s_add_u32', s(s_tmp), s(s_tmp), hex(base))
        for i, r in enumerate(self.stamps):
            self.e('v_mov_b32', v(vt2), s(r))
            self.e('buffer_store_dword', v(vt2), v(vt), s(srd, 4), s(s_tmp), mods='offen offset:%d' % (4 * i))

    def c(self, text):
        self.ins.append('    ; ' + text)

    def label(self, name=None):
        if name is None:
            self.nlabel += 1
            name = 'L_%s_%d' % (self.name, self.nlabel)
        return name

    def place(self, name, pad=True):
        self.ins.append(name + ':')
        if pad:
            nop = self._classify('s_nop', ['7'], '')
            self.ins.append(nop)
            nop2 = self._classify('s_nop', ['3'], '')
            self.ins.append(nop2)
            self.hist = [nop, nop2]

    def barrier(self):
        self.wait(lgkm=0)
        self.e('s_barrier')

    def body(self):
        out = ['.p2align 8', '.globl %s' % self.name, '.type %s,@function' % self.name, self.name + ':']
        for i in self.ins:
            out.append(i if isinstance(i, str) else i.text)
        return '\n'.join(out) + '\n'

    def desc(self):
        nv = max(self.maxv, 8)
        acc = (nv + 3) // 4 * 4
        total = acc + (self.maxa + 1) if self.maxa >= 0 else nv
        ns = max(self.maxs, 16)
        return ('.p2align 6\n.amdhsa_kernel %s\n'
                '  .amdhsa_next_free_vgpr %d\n'
                '  .amdhsa_next_free_sgpr %d\n'
                '  .amdhsa_accum_offset %d\n'
                '  .amdhsa_group_segment_fixed_size 0\n'
                '  .amdhsa_kernarg_size 88\n'
                '  .amdhsa_user_sgpr_count 2\n'
                '  .amdhsa_user_sgpr_kernarg_segment_ptr 1\n'
                '  .amdhsa_system_sgpr_workgroup_id_x 1\n'
                '  .amdhsa_float_denorm_mode_32 3\n'
                '  .amdhsa_float_denorm_mode_16_64 3\n'
                '.end_amdhsa_kernel\n') % (self.name, total, ns, acc)


def build_file(header_lines, kernels, launches):
    out = list(header_lines)
    for k in launches:
        out.append('; @launch kernel=%s grid=(%d,1,1) block=(%d,1,1) lds=%d' % (k.name, k.grid, k.block, k.lds))
    out.append('.amdgcn_target "amdgcn-amd-amdhsa--gfx950"')
    out.append('.text')
    txt = '\n'.join(out) + '\n'
    for k in kernels:
        txt += k.body()
    txt += '.section .rodata,"a"\n'
    for k in kernels:
        txt += k.desc()
    return txt
```

```python
import sys, os, struct
sys.path.insert(0, os.path.dirname(os.path.abspath(__file__)))
from asmlib import *

NAME = 'sequential_preLN__linear_kernel_hedgehog__glu_gated_geglu__prompt'

KA_X, KA_WQKV, KA_WPHI, KA_WO, KA_BX, KA_WG, KA_WU, KA_WD, KA_OUT, KA_DBG, KA_WS = [8 * i for i in range(11)]
XN = 0
WQKV = 0x200000
WPHI = 0x380000
WO = 0x400000
WGU = 0x500000
CS = 0x820000
WD = 0x900000
PHIQ = 0xB00000
KVP = 0xF00000
OF = 0x1100000
HF = 0x1300000
STATS = 0x1500000
HH = 0x1600000
DIAGB = 0x1D00000
WS_USED = 0x1E00000
DIAG = bool(os.environ.get('DIAG'))
OOB = 0x40000000

LOG2E = 1.4426950408889634


def f32(x):
    return '0x%08x' % struct.unpack('<I', struct.pack('<f', x))[0]


def load_srd(k, sd, ka_off, nbytes, tmp):
    k.e('s_load_dwordx2', s(tmp, 2), 's[0:1]', ka_off)


def make_srd(k, sd, tmp, nbytes):
    k.e('s_mov_b32', s(sd), s(tmp))
    k.e('s_and_b32', s(sd + 1), s(tmp + 1), '0xffff')
    k.e('s_mov_b32', s(sd + 2), hex(nbytes))
    k.e('s_mov_b32', s(sd + 3), '0x20000')


def bf16_round(k, dst, src):
    k.e('v_cvt_pk_bf16_f32', v(dst), v(src), v(src))
    k.e('v_lshlrev_b32', v(dst), 16, v(dst))


def swap_op(k, op, x, tmp):
    k.e('v_mov_b32', v(tmp), v(x))
    k.e('v_permlane32_swap_b32', v(x), v(tmp))
    k.e(op, v(x), v(x), v(tmp))


N_LN, N_QKV, N_WO, N_GU, N_WD, N_PHI = 256, 192, 56, 448, 224, 16


def gen_k0():
    njobs = N_LN + N_QKV + N_WO + N_GU + N_WD + N_PHI
    k = Kernel('prep_kernel', lds=0, grid=(njobs + 3) // 4, block=256)
    k._snext = 4
    S_WS = k.salloc(4, 4)
    S_SRC = k.salloc(4, 4)
    S_T = k.salloc(2, 2)
    S_T2 = k.salloc(2, 2)
    s_job = k.salloc()
    s_a, s_b, s_c, s_d, s_off, s_dst = [k.salloc() for _ in range(6)]
    s_ones = k.salloc()
    k._vnext = 1
    v_lane, v_n, v_hi, v_t, v_off, v_off2, v_dst = [k.valloc() for _ in range(7)]
    v_cs = k.valloc()
    v_ld = k.valloc(64, 4)
    v_pk = k.valloc(32, 4)

    L_end = k.label()
    if DIAG:
        k.stamp_init()
        k.stamp()

    def fin():
        if DIAG:
            n = len(k.stamps)
            k.stamp()
            k.stamp_store(S_WS, DIAGB, v_t, v_off, s_off)
            k.stamps = k.stamps[:n]
    k.e('s_load_dwordx2', s(S_T, 2), 's[0:1]', KA_WS)
    k.e('v_lshrrev_b32', v(v_t), 6, 'v0')
    k.e('v_and_b32', v(v_lane), 63, 'v0')
    k.e('v_readfirstlane_b32', s(s_job), v(v_t))
    k.e('s_lshl_b32', s(s_a), 's2', 2)
    k.e('s_add_u32', s(s_job), s(s_job), s(s_a))
    k.e('v_and_b32', v(v_n), 31, v(v_lane))
    k.e('v_lshrrev_b32', v(v_hi), 5, v(v_lane))
    make_srd(k, S_WS, S_T, WS_USED)
    k.e('s_mov_b32', s(s_ones), '0x3f803f80')
    k.e('s_cmp_ge_u32', s(s_job), njobs)
    k.e('s_cbranch_scc1', L_end)

    labels = {n: k.label() for n in ('qkv', 'wo', 'gu', 'wd', 'phi')}
    k.e('s_cmp_ge_u32', s(s_job), N_LN)
    k.e('s_cbranch_scc1', labels['qkv'])

    k.c('LN job: 8 rows per wave')
    k.e('s_load_dwordx2', s(S_T2, 2), 's[0:1]', KA_X)
    v_r, v_c = v_n, v_hi
    k.e('v_lshrrev_b32', v(v_r), 3, v(v_lane))
    k.e('v_and_b32', v(v_c), 7, v(v_lane))
    k.e('s_lshl_b32', s(s_a), s(s_job), 3)
    k.e('v_add_u32', v(v_r), s(s_a), v(v_r))
    k.e('v_mul_u32_u24', v(v_off), 896, v(v_r))
    k.e('v_lshl_add_u32', v(v_off), v(v_c), 4, v(v_off))
    make_srd(k, S_SRC, S_T2, 2048 * 896)
    mk = k.vmark()
    v_raw = v_pk
    v_f = v_ld
    for m in range(7):
        k.e('buffer_load_dwordx4', v(v_raw + 4 * m, 4), v(v_off), s(S_SRC, 4), 0, mods='offen offset:%d' % (128 * m))
    v_a, v_b, v_sum, v_m, v_rs = [k.valloc() for _ in range(5)]
    k.e('v_lshrrev_b32', v(v_a), 5, v(v_r))
    k.e('v_mul_u32_u24', v(v_dst), 28672, v(v_a))
    k.e('v_lshrrev_b32', v(v_a), 1, v(v_c))
    k.e('v_lshl_add_u32', v(v_dst), v(v_a), 10, v(v_dst))
    k.e('v_and_b32', v(v_a), 31, v(v_r))
    k.e('v_and_b32', v(v_b), 1, v(v_c))
    k.e('v_lshl_add_u32', v(v_a), v(v_b), 5, v(v_a))
    k.e('v_lshl_add_u32', v(v_dst), v(v_a), 4, v(v_dst))
    for i in range(28):
        k.e('v_lshlrev_b32', v(v_f + 2 * i), 16, v(v_raw + i))
        k.e('v_and_b32', v(v_f + 2 * i + 1), '0xffff0000', v(v_raw + i))
    k.e('v_add_f32', v(v_sum), v(v_f), v(v_f + 1))
    k.e('v_add_f32', v(v_a), v(v_f + 2), v(v_f + 3))
    for i in range(4, 56, 2):
        k.e('v_add_f32', v(v_sum), v(v_sum), v(v_f + i))
        k.e('v_add_f32', v(v_a), v(v_a), v(v_f + i + 1))
    k.e('v_add_f32', v(v_sum), v(v_sum), v(v_a))

    def red8(x):
        k.e('v_add_f32_dpp', v(x), v(x), v(x), mods='quad_perm:[1,0,3,2] row_mask:0xf bank_mask:0xf')
        k.e('v_add_f32_dpp', v(x), v(x), v(x), mods='quad_perm:[2,3,0,1] row_mask:0xf bank_mask:0xf')
        k.e('v_add_f32_dpp', v(x), v(x), v(x), mods='row_half_mirror row_mask:0xf bank_mask:0xf')
    red8(v_sum)
    k.e('v_mul_f32', v(v_m), f32(1.0 / 448), v(v_sum))
    k.e('v_sub_f32', v(v_a), v(v_f), v(v_m))
    k.e('v_mul_f32', v(v_sum), v(v_a), v(v_a))
    k.e('v_sub_f32', v(v_b), v(v_f + 1), v(v_m))
    k.e('v_mul_f32', v(v_rs), v(v_b), v(v_b))
    for i in range(2, 56, 2):
        k.e('v_sub_f32', v(v_a), v(v_f + i), v(v_m))
        k.e('v_sub_f32', v(v_b), v(v_f + i + 1), v(v_m))
        k.e('v_fmac_f32', v(v_sum), v(v_a), v(v_a))
        k.e('v_fmac_f32', v(v_rs), v(v_b), v(v_b))
    k.e('v_add_f32', v(v_sum), v(v_sum), v(v_rs))
    red8(v_sum)
    k.e('v_mul_f32', v(v_sum), f32(1.0 / 448), v(v_sum))
    bf16_round(k, v_sum, v_sum)
    k.e('v_add_f32', v(v_sum), f32(1e-5), v(v_sum))
    bf16_round(k, v_sum, v_sum)
    k.e('v_sqrt_f32', v(v_sum), v(v_sum))
    bf16_round(k, v_sum, v_sum)
    k.e('v_rcp_f32', v(v_rs), v(v_sum))
    bf16_round(k, v_m, v_m)
    for i in range(28):
        x0, x1 = v_f + 2 * i, v_f + 2 * i + 1
        k.e('v_sub_f32', v(x0), v(x0), v(v_m))
        k.e('v_sub_f32', v(x1), v(x1), v(v_m))
        k.e('v_cvt_pk_bf16_f32', v(v_a), v(x0), v(x1))
        k.e('v_lshlrev_b32', v(x0), 16, v(v_a))
        k.e('v_and_b32', v(x1), '0xffff0000', v(v_a))
        k.e('v_mul_f32', v(x0), v(x0), v(v_rs))
        k.e('v_mul_f32', v(x1), v(x1), v(v_rs))
        k.e('v_cvt_pk_bf16_f32', v(v_raw + i), v(x0), v(x1))
    for m in range(7):
        k.e('s_mov_b32', s(s_off), hex(XN + 4096 * m))
        k.e('buffer_store_dwordx4', v(v_raw + 4 * m, 4), v(v_dst), s(S_WS, 4), s(s_off), mods='offen')
    fin()
    k.e('s_endpgm')
    k.vrelease(mk)

    def swz(nfrag, stride, perm, row_of, voff_of, dst_of, colsum=False):
        for fi in range(nfrag):
            for j in range(8):
                kj = (8 * (j >> 2) + (j & 3)) if perm else j
                k.e('s_add_u32', s(s_off), s(s_a), (row_of(fi) + kj) * stride)
                k.e('buffer_load_ushort', v(v_ld + 8 * fi + j), v(voff_of(fi, j)), s(S_SRC, 4), s(s_off), mods='offen')
        for fi in range(nfrag):
            for d in range(4):
                k.e('v_lshl_or_b32', v(v_pk + 4 * fi + d), v(v_ld + 8 * fi + 2 * d + 1), 16, v(v_ld + 8 * fi + 2 * d))
            if colsum:
                for d in range(4):
                    k.e('v_dot2_f32_bf16', v(v_cs), v(v_pk + 4 * fi + d), s(s_ones), v(v_cs))
            k.e('s_add_u32', s(s_off), s(s_dst), dst_of(fi))
            k.e('buffer_store_dwordx4', v(v_pk + 4 * fi, 4), v(v_dst), s(S_WS, 4), s(s_off), mods='offen')

    def start(name, nxt, lim, ka, nbytes, base):
        k.place(labels[name])
        k.vmq, k.lgq = [], []
        if nxt:
            k.e('s_cmp_ge_u32', s(s_job), lim)
            k.e('s_cbranch_scc1', labels[nxt])
        k.e('s_load_dwordx2', s(S_T2, 2), 's[0:1]', ka) if ka is not None else None
        k.e('s_sub_u32', s(s_job), s(s_job), base)
        k.e('v_lshlrev_b32', v(v_dst), 4, v(v_lane))

    b0 = N_LN
    start('qkv', 'wo', b0 + N_QKV, KA_WQKV, 0, b0)
    k.e('s_and_b32', s(s_c), s(s_job), 3)
    k.e('s_lshr_b32', s(s_b), s(s_job), 2)
    k.e('s_mul_i32', s(s_d), s(s_b), 21846)
    k.e('s_lshr_b32', s(s_d), s(s_d), 16)
    k.e('s_mul_i32', s(s_a), s(s_d), 3)
    k.e('s_sub_u32', s(s_b), s(s_b), s(s_a))
    k.e('s_add_u32', s(s_a), s(s_b), 1)
    k.e('s_cmp_eq_u32', s(s_a), 3)
    k.e('s_cselect_b32', s(s_a), 0, s(s_a))
    k.e('s_mul_i32', s(s_a), s(s_a), 896)
    k.e('s_mul_i32', s(s_off), s(s_d), 56)
    k.e('s_add_u32', s(s_a), s(s_a), s(s_off))
    k.e('s_mul_i32', s(s_off), s(s_c), 112 * 2688)
    k.e('s_add_u32', s(s_a), s(s_a), s(s_off))
    k.e('s_mul_i32', s(s_dst), s(s_d), 28)
    k.e('s_mul_i32', s(s_off), s(s_c), 7)
    k.e('s_add_u32', s(s_dst), s(s_dst), s(s_off))
    k.e('s_mul_i32', s(s_dst), s(s_dst), 3)
    k.e('s_add_u32', s(s_dst), s(s_dst), s(s_b))
    k.e('s_lshl_b32', s(s_dst), s(s_dst), 10)
    k.e('s_add_u32', s(s_dst), s(s_dst), hex(WQKV))
    k.e('v_mul_u32_u24', v(v_off), 8 * 2688, v(v_hi))
    k.e('v_lshl_add_u32', v(v_off), v(v_n), 1, v(v_off))
    k.e('v_mov_b32', v(v_t), hex(OOB))
    k.e('v_cmp_gt_u32', 'vcc', 28, v(v_n))
    k.e('v_cndmask_b32', v(v_off), v(v_t), v(v_off), 'vcc')
    make_srd(k, S_SRC, S_T2, 448 * 2688)
    swz(7, 2688, False, lambda fi: 16 * fi, lambda fi, j: v_off, lambda fi: 3072 * fi)
    fin()
    k.e('s_endpgm')

    b0 += N_QKV
    start('wo', 'gu', b0 + N_WO, KA_WO, 0, b0)
    k.e('s_and_b32', s(s_c), s(s_job), 3)
    k.e('s_lshr_b32', s(s_b), s(s_job), 2)
    k.e('s_mul_i32', s(s_a), s(s_c), 4 * 28 * 896)
    k.e('s_lshl_b32', s(s_off), s(s_b), 6)
    k.e('s_add_u32', s(s_a), s(s_a), s(s_off))
    k.e('s_lshl_b32', s(s_dst), s(s_b), 5)
    k.e('s_lshl_b32', s(s_off), s(s_c), 3)
    k.e('s_add_u32', s(s_dst), s(s_dst), s(s_off))
    k.e('s_lshl_b32', s(s_dst), s(s_dst), 10)
    k.e('s_add_u32', s(s_dst), s(s_dst), hex(WO))
    k.e('v_mul_u32_u24', v(v_off), 4 * 896, v(v_hi))
    k.e('v_lshl_add_u32', v(v_off), v(v_n), 1, v(v_off))
    k.e('v_mov_b32', v(v_t), hex(OOB))
    k.e('v_cmp_eq_u32', 'vcc', 0, v(v_hi))
    k.e('v_cndmask_b32', v(v_off2), v(v_t), v(v_off), 'vcc')
    make_srd(k, S_SRC, S_T2, 448 * 896)
    swz(8, 896, True, lambda fi: 28 * (fi >> 1) + 16 * (fi & 1),
        lambda fi, j: v_off2 if ((fi & 1) and j >= 4) else v_off, lambda fi: 1024 * fi)
    fin()
    k.e('s_endpgm')

    b0 += N_WO
    start('gu', 'wd', b0 + N_GU, None, 0, b0)
    k.e('s_and_b32', s(s_c), s(s_job), 3)
    k.e('s_lshr_b32', s(s_b), s(s_job), 2)
    k.e('s_cmp_ge_u32', s(s_b), 56)
    k.e('s_cselect_b32', s(s_d), 1, 0)
    k.e('s_mul_i32', s(s_a), s(s_d), 56)
    k.e('s_sub_u32', s(s_b), s(s_b), s(s_a))
    k.e('s_load_dwordx4', s(S_SRC, 4), 's[0:1]', KA_WG)
    k.e('s_cmp_eq_u32', s(s_d), 0)
    k.e('s_cselect_b32', s(S_T2), s(S_SRC), s(S_SRC + 2))
    k.e('s_cselect_b32', s(S_T2 + 1), s(S_SRC + 1), s(S_SRC + 3))
    make_srd(k, S_SRC, S_T2, 448 * 3584)
    k.e('s_mul_i32', s(s_a), s(s_c), 112 * 3584)
    k.e('s_lshl_b32', s(s_off), s(s_b), 6)
    k.e('s_add_u32', s(s_a), s(s_a), s(s_off))
    k.e('s_mul_i32', s(s_dst), s(s_b), 56)
    k.e('s_mul_i32', s(s_off), s(s_c), 7)
    k.e('s_add_u32', s(s_dst), s(s_dst), s(s_off))
    k.e('s_lshl_b32', s(s_dst), s(s_dst), 10)
    k.e('s_lshl_b32', s(s_off), s(s_d), 8)
    k.e('s_add_u32', s(s_dst), s(s_dst), s(s_off))
    k.e('s_add_u32', s(s_dst), s(s_dst), hex(WGU))
    k.e('v_lshrrev_b32', v(v_t), 4, v(v_n))
    k.e('v_mul_u32_u24', v(v_dst), 28672, v(v_t))
    k.e('v_and_b32', v(v_off2), 15, v(v_n))
    k.e('v_lshl_add_u32', v(v_off2), v(v_hi), 5, v(v_off2))
    k.e('v_lshl_add_u32', v(v_dst), v(v_off2), 4, v(v_dst))
    k.e('v_mul_u32_u24', v(v_off), 4 * 3584, v(v_hi))
    k.e('v_lshl_add_u32', v(v_off), v(v_n), 1, v(v_off))
    k.e('v_mov_b32', v(v_cs), 0)
    swz(7, 3584, True, lambda fi: 16 * fi, lambda fi, j: v_off, lambda fi: 1024 * fi, colsum=True)
    swap_op(k, 'v_add_f32', v_cs, v_off)
    k.e('v_lshrrev_b32', v(v_t), 4, v(v_n))
    k.e('v_and_b32', v(v_off), 15, v(v_n))
    k.e('v_lshl_add_u32', v(v_off), v(v_t), 5, v(v_off))
    k.e('v_lshlrev_b32', v(v_off), 2, v(v_off))
    k.e('v_mov_b32', v(v_t), hex(OOB))
    k.e('v_cmp_eq_u32', 'vcc', 0, v(v_hi))
    k.e('v_cndmask_b32', v(v_off), v(v_t), v(v_off), 'vcc')
    k.e('s_mul_i32', s(s_off), s(s_c), 112 * 128)
    k.e('s_lshl_b32', s(s_a), s(s_b), 8)
    k.e('s_add_u32', s(s_off), s(s_off), s(s_a))
    k.e('s_lshl_b32', s(s_a), s(s_d), 6)
    k.e('s_add_u32', s(s_off), s(s_off), s(s_a))
    k.e('s_add_u32', s(s_off), s(s_off), hex(CS))
    k.e('buffer_store_dword', v(v_cs), v(v_off), s(S_WS, 4), s(s_off), mods='offen')
    fin()
    k.e('s_endpgm')

    b0 += N_GU
    start('wd', 'phi', b0 + N_WD, KA_WD, 0, b0)
    k.e('s_and_b32', s(s_c), s(s_job), 15)
    k.e('s_lshr_b32', s(s_b), s(s_job), 4)
    k.e('s_mul_i32', s(s_a), s(s_c), 112 * 896)
    k.e('s_lshl_b32', s(s_off), s(s_b), 6)
    k.e('s_add_u32', s(s_a), s(s_a), s(s_off))
    k.e('s_mul_i32', s(s_dst), s(s_b), 112)
    k.e('s_mul_i32', s(s_off), s(s_c), 7)
    k.e('s_add_u32', s(s_dst), s(s_dst), s(s_off))
    k.e('s_lshl_b32', s(s_dst), s(s_dst), 10)
    k.e('s_add_u32', s(s_dst), s(s_dst), hex(WD))
    k.e('v_mul_u32_u24', v(v_off), 4 * 896, v(v_hi))
    k.e('v_lshl_add_u32', v(v_off), v(v_n), 1, v(v_off))
    make_srd(k, S_SRC, S_T2, 1792 * 896)
    swz(7, 896, True, lambda fi: 16 * fi, lambda fi, j: v_off, lambda fi: 1024 * fi)
    fin()
    k.e('s_endpgm')

    b0 += N_WD
    start('phi', None, 0, KA_WPHI, 0, b0)
    k.e('s_mul_i32', s(s_a), s(s_job), 1568)
    k.e('s_lshl_b32', s(s_dst), s(s_job), 11)
    k.e('s_add_u32', s(s_dst), s(s_dst), hex(WPHI))
    k.e('v_subrev_u32', v(v_t), 28, v(v_n))
    k.e('v_cmp_gt_u32', 'vcc', 28, v(v_n))
    k.e('v_cndmask_b32', v(v_t), v(v_t), v(v_n), 'vcc')
    k.e('v_mul_u32_u24', v(v_off), 4 * 56, v(v_hi))
    k.e('v_lshl_add_u32', v(v_off), v(v_t), 1, v(v_off))
    k.e('v_mov_b32', v(v_t), hex(OOB))
    k.e('v_cmp_eq_u32', 'vcc', 0, v(v_hi))
    k.e('v_cndmask_b32', v(v_off2), v(v_t), v(v_off), 'vcc')
    make_srd(k, S_SRC, S_T2, 16 * 1568)
    swz(2, 56, True, lambda fi: 16 * fi, lambda fi, j: v_off2 if (fi == 1 and j >= 4) else v_off, lambda fi: 1024 * fi)
    fin()
    k.place(L_end, pad=False)
    k.e('s_endpgm')
    return k


def rb_hd_decode(k, s_rb, s_hd, s_t):
    k.e('s_and_b32', s(s_t), 's2', 3)
    k.e('s_lshl_b32', s(s_rb), s(s_t), 2)
    k.e('s_bfe_u32', s(s_t), 's2', hex((2 << 16) | 3))
    k.e('s_add_u32', s(s_rb), s(s_rb), s(s_t))
    k.e('s_bfe_u32', s(s_hd), 's2', hex((1 << 16) | 2))
    k.e('s_lshl_b32', s(s_hd), s(s_hd), 3)
    k.e('s_lshr_b32', s(s_t), 's2', 5)
    k.e('s_add_u32', s(s_hd), s(s_hd), s(s_t))


def softmax_pm(k, p, outp, outm, tmp, v_mask, s_l2e):
    mx, mn, t0, sp, sm = tmp, tmp + 1, tmp + 2, tmp + 3, tmp + 4
    sp2, sm2 = tmp + 5, tmp + 6
    em = tmp + 8
    k.e('v_max3_f32', v(mx), v(p), v(p + 1), v(p + 2))
    k.e('v_min3_f32', v(mn), v(p), v(p + 1), v(p + 2))
    for i in range(3, 15, 2):
        k.e('v_max3_f32', v(mx), v(mx), v(p + i), v(p + i + 1))
        k.e('v_min3_f32', v(mn), v(mn), v(p + i), v(p + i + 1))
    k.e('v_max_f32', v(mx), v(mx), v(p + 15))
    k.e('v_min_f32', v(mn), v(mn), v(p + 15))
    swap_op(k, 'v_max_f32', mx, t0)
    swap_op(k, 'v_min_f32', mn, t0)
    k.e('v_mul_f32', v(mx), s(s_l2e), v(mx))
    k.e('v_mul_f32', v(mn), s(s_l2e), v(mn))
    for i in range(16):
        k.e('v_fma_f32', v(em + i), '-' + v(p + i), s(s_l2e), v(mn))
        k.e('v_fma_f32', v(p + i), v(p + i), s(s_l2e), '-' + v(mx))
    for i in range(16):
        k.e('v_exp_f32', v(em + i), v(em + i))
        k.e('v_exp_f32', v(p + i), v(p + i))
    k.e('v_add_f32', v(sp), v(p), v(p + 1))
    k.e('v_add_f32', v(sm), v(em), v(em + 1))
    for i in range(2, 12):
        k.e('v_add_f32', v(sp), v(sp), v(p + i))
        k.e('v_add_f32', v(sm), v(sm), v(em + i))
    k.e('v_add_f32', v(sp2), v(p + 12), v(p + 13))
    k.e('v_add_f32', v(sm2), v(em + 12), v(em + 13))
    for i in (14, 15):
        k.e('v_add_f32', v(sp2), v(sp2), v(p + i))
        k.e('v_add_f32', v(sm2), v(sm2), v(em + i))
    k.e('v_fmac_f32', v(sp), v(sp2), v(v_mask))
    k.e('v_fmac_f32', v(sm), v(sm2), v(v_mask))
    swap_op(k, 'v_add_f32', sp, t0)
    swap_op(k, 'v_add_f32', sm, t0)
    k.e('v_rcp_f32', v(sp), v(sp))
    k.e('v_rcp_f32', v(sm), v(sm))
    k.e('v_mul_f32', v(sp2), v(sp), v(v_mask))
    k.e('v_mul_f32', v(sm2), v(sm), v(v_mask))
    for i in range(16):
        k.e('v_mul_f32', v(p + i), v(p + i), v(sp if i < 12 else sp2))
        k.e('v_mul_f32', v(em + i), v(em + i), v(sm if i < 12 else sm2))
    for i in range(8):
        k.e('v_cvt_pk_bf16_f32', v(outp + i), v(p + 2 * i), v(p + 2 * i + 1))
        k.e('v_cvt_pk_bf16_f32', v(outm + i), v(em + 2 * i), v(em + 2 * i + 1))


MF32 = 'v_mfma_f32_32x32x16_bf16'
MF16 = 'v_mfma_f32_16x16x32_bf16'


def gen_k1a():
    L_PHIK = 86016
    L_V = L_PHIK + 128 * 136
    k = Kernel('qkv_kernel', lds=L_V + 128 * 72, grid=256, block=256)
    k._snext = 4
    S_WS = k.salloc(4, 4)
    S_T = k.salloc(2, 2)
    s_rb, s_hd, s_w, s_t, s_wb, s_xb, s_off, s_l2e, s_T = [k.salloc() for _ in range(9)]
    k._vnext = 1
    v_lane, v_l16, v_t, v_mask, v_row, v_hi, v_a, v_b = [k.valloc() for _ in range(8)]
    v_x = k.valloc(112, 4)
    v_w = k.valloc(48, 4)
    v_acc = k.valloc(48, 4)
    v_phi = k.valloc(8, 4)
    L_end = k.label()
    k.e('s_cmp_ge_u32', 's2', 256)
    k.e('s_cbranch_scc1', L_end)
    if DIAG:
        k.stamp_init()
        k.stamp()
    k.e('s_load_dwordx2', s(S_T, 2), 's[0:1]', KA_WS)
    k.e('v_lshrrev_b32', v(v_t), 6, 'v0')
    k.e('v_and_b32', v(v_lane), 63, 'v0')
    k.e('v_readfirstlane_b32', s(s_w), v(v_t))
    k.e('v_lshlrev_b32', v(v_l16), 4, v(v_lane))
    rb_hd_decode(k, s_rb, s_hd, s_t)
    k.e('s_lshl_b32', s(s_T), s(s_rb), 2)
    k.e('s_add_u32', s(s_T), s(s_T), s(s_w))
    k.e('s_mul_i32', s(s_xb), s(s_T), 28672)
    k.e('s_add_u32', s(s_xb), s(s_xb), hex(XN)) if XN else None
    k.e('s_mul_i32', s(s_wb), s(s_hd), 86016)
    k.e('s_add_u32', s(s_wb), s(s_wb), hex(WQKV))
    k.e('s_mul_i32', s(s_t), s(s_w), 3072)
    k.e('s_add_u32', s(s_wb), s(s_wb), s(s_t))
    k.e('s_mov_b32', s(s_l2e), f32(LOG2E))
    make_srd(k, S_WS, S_T, WS_USED)
    for ph in range(7):
        k.e('s_add_u32', 'm0', s(s_t), 12288 * ph)
        k.e('s_add_u32', s(s_off), s(s_wb), 12288 * ph)
        for i in range(3):
            k.e('buffer_load_dwordx4', v(v_l16), s(S_WS, 4), s(s_off), mods='offen offset:%d lds' % (1024 * i), tag='ph%d' % ph)
        k.e('s_add_u32', s(s_off), s(s_xb), 4096 * ph)
        for i in range(4):
            ks = 4 * ph + i
            k.e('buffer_load_dwordx4', v(v_x + 4 * ks, 4), v(v_l16), s(S_WS, 4), s(s_off), mods='offen offset:%d' % (1024 * i))
    k.e('s_lshl_b32', s(s_off), s(s_hd), 11)
    k.e('s_add_u32', s(s_off), s(s_off), hex(WPHI))
    for u in range(2):
        k.e('buffer_load_dwordx4', v(v_phi + 4 * u, 4), v(v_l16), s(S_WS, 4), s(s_off), mods='offen offset:%d' % (1024 * u))
    k.e('v_and_b32', v(v_row), 31, v(v_lane))
    k.e('v_lshrrev_b32', v(v_hi), 5, v(v_lane))
    k.e('v_cmp_eq_u32', 'vcc', 0, v(v_hi))
    k.e('v_cndmask_b32', v(v_mask), 0, '1.0', 'vcc')
    k.e('v_add_u32', v(v_a), 49152, v(v_l16))
    for ph in range(7):
        k.wait_tag('ph%d' % ph)
        k.barrier()
        if ph in (0, 3):
            k.stamp()
        for i in range(12):
            off = 12288 * ph + 1024 * i
            if off < 49152:
                k.e('ds_read_b128', v(v_w + 4 * i, 4), v(v_l16), mods='offset:%d' % off)
            else:
                k.e('ds_read_b128', v(v_w + 4 * i, 4), v(v_a), mods='offset:%d' % (off - 49152))
        for i in range(4):
            ks = 4 * ph + i
            for p in range(3):
                c = v(v_acc + 16 * p, 16) if ks else '0'
                k.e(MF32, v(v_acc + 16 * p, 16), v(v_w + 4 * (3 * i + p), 4), v(v_x + 4 * ks, 4), c)
    k.stamp()
    tmp = v_x
    v_kb = tmp
    v_qb = tmp + 8
    v_vb = tmp + 16
    v_pk = tmp + 24
    v_pq = tmp + 40
    v_sc = tmp + 56
    v_o1 = tmp + 80
    v_o2 = tmp + 96
    for i in range(8):
        k.e('v_cvt_pk_bf16_f32', v(v_kb + i), v(v_acc + 2 * i), v(v_acc + 2 * i + 1))
    for i in range(8):
        k.e('v_cvt_pk_bf16_f32', v(v_qb + i), v(v_acc + 32 + 2 * i), v(v_acc + 32 + 2 * i + 1))
    for u in range(2):
        k.e(MF32, v(v_pk, 16), v(v_phi + 4 * u, 4), v(v_kb + 4 * u, 4), v(v_pk, 16) if u else '0')
    for u in range(2):
        k.e(MF32, v(v_pq, 16), v(v_phi + 4 * u, 4), v(v_qb + 4 * u, 4), v(v_pq, 16) if u else '0')
    for i in range(8):
        k.e('v_cvt_pk_bf16_f32', v(v_vb + i), v(v_acc + 16 + 2 * i), v(v_acc + 16 + 2 * i + 1))
    k.e('v_mov_b32', v(v_t), '0x3f80')
    k.e('v_cndmask_b32', v(v_vb + 6), v(v_t), v(v_vb + 6), 'vcc')
    k.e('s_lshl_b32', s(s_t), s(s_w), 5)
    k.e('v_add_u32', v(v_t), s(s_t), v(v_row))
    k.e('v_mul_u32_u24', v(v_a), 72, v(v_t))
    k.e('v_lshl_add_u32', v(v_a), v(v_hi), 3, v(v_a))
    k.e('v_add_u32', v(v_a), L_V, v(v_a))
    k.e('v_mul_u32_u24', v(v_b), 136, v(v_t))
    k.e('v_lshl_add_u32', v(v_b), v(v_hi), 3, v(v_b))
    k.e('v_add_u32', v(v_b), L_PHIK, v(v_b))
    for g in range(4):
        k.e('ds_write_b64', v(v_a), v(v_vb + 2 * g, 2), mods='offset:%d' % (16 * g))
    softmax_pm(k, v_pk, v_o1, v_o1 + 8, v_sc, v_mask, s_l2e)
    for p in range(2):
        for g in range(4):
            k.e('ds_write_b64', v(v_b), v(v_o1 + 8 * p + 2 * g, 2), mods='offset:%d' % (64 * p + 16 * g))
    softmax_pm(k, v_pq, v_o2, v_o2 + 8, v_sc, v_mask, s_l2e)
    k.e('s_lshl_b32', s(s_off), s(s_T), 4)
    k.e('s_add_u32', s(s_off), s(s_off), s(s_hd))
    k.e('s_lshl_b32', s(s_off), s(s_off), 12)
    k.e('s_add_u32', s(s_off), s(s_off), hex(PHIQ))
    for f in range(4):
        k.e('buffer_store_dwordx4', v(v_o2 + 4 * f, 4), v(v_l16), s(S_WS, 4), s(s_off), mods='offen offset:%d' % (1024 * f))
    k.barrier()
    k.stamp()
    v_af = v_w
    v_bf = v_w + 16
    v_kv = v_acc
    k.e('v_lshrrev_b32', v(v_t), 4, v(v_lane))
    k.e('v_bfe_u32', v(v_a), v(v_lane), 2, 2)
    k.e('v_lshl_add_u32', v(v_t), v(v_t), 3, v(v_a))
    k.e('v_and_b32', v(v_row), 3, v(v_lane))
    k.e('v_mul_u32_u24', v(v_a), 136, v(v_t))
    k.e('v_lshl_add_u32', v(v_a), v(v_row), 3, v(v_a))
    k.e('s_lshl_b32', s(s_t), s(s_w), 5)
    k.e('s_add_u32', s(s_t), s(s_t), L_PHIK)
    k.e('v_add_u32', v(v_a), s(s_t), v(v_a))
    k.e('v_mul_u32_u24', v(v_b), 72, v(v_t))
    k.e('v_lshl_add_u32', v(v_b), v(v_row), 3, v(v_b))
    k.e('v_add_u32', v(v_b), L_V, v(v_b))
    for kk in range(4):
        for t in range(2):
            k.e('ds_read_b64_tr_b16', v(v_af + 4 * kk + 2 * t, 2), v(v_a), mods='offset:%d' % ((32 * kk + 4 * t) * 136))
        for dt in range(2):
            for t in range(2):
                k.e('ds_read_b64_tr_b16', v(v_bf + 16 * dt + 4 * kk + 2 * t, 2), v(v_b), mods='offset:%d' % ((32 * kk + 4 * t) * 72 + 32 * dt))
    for kk in range(4):
        for dt in range(2):
            k.e(MF16, v(v_kv + 4 * dt, 4), v(v_af + 4 * kk, 4), v(v_bf + 16 * dt + 4 * kk, 4), v(v_kv + 4 * dt, 4) if kk else '0')
    k.e('v_and_b32', v(v_a), 15, v(v_lane))
    k.e('v_bfe_u32', v(v_t), v(v_lane), 4, 1)
    k.e('v_lshl_add_u32', v(v_a), v(v_t), 5, v(v_a))
    k.e('v_lshlrev_b32', v(v_a), 5, v(v_a))
    k.e('v_lshrrev_b32', v(v_t), 5, v(v_lane))
    k.e('v_lshl_add_u32', v(v_a), v(v_t), 4, v(v_a))
    k.e('s_lshl_b32', s(s_off), s(s_hd), 4)
    k.e('s_add_u32', s(s_off), s(s_off), s(s_rb))
    k.e('s_lshl_b32', s(s_off), s(s_off), 13)
    k.e('s_lshl_b32', s(s_t), s(s_w), 11)
    k.e('s_add_u32', s(s_off), s(s_off), s(s_t))
    k.e('s_add_u32', s(s_off), s(s_off), hex(KVP))
    for dt in range(2):
        k.e('buffer_store_dwordx4', v(v_kv + 4 * dt, 4), v(v_a), s(S_WS, 4), s(s_off), mods='offen offset:%d' % (512 * dt))
    k.stamp()
    k.stamp_store(S_WS, DIAGB + 0x20000 * 1, v_t, v_lane, s_t)
    k.place(L_end, pad=False)
    k.e('s_endpgm')
    return k


def gen_k1b():
    k = Kernel('attn_kernel', lds=4096, grid=256, block=256)
    k._snext = 4
    S_WS = k.salloc(4, 4)
    S_T = k.salloc(2, 2)
    s_rb, s_hd, s_w, s_t, s_off, s_T = [k.salloc() for _ in range(6)]
    k._vnext = 1
    v_lane, v_l16, v_t, v_t32, v_t16, v_den = [k.valloc() for _ in range(6)]
    v_p = k.valloc(128, 4)
    v_q = k.valloc(16, 4)
    v_kv = k.valloc(16, 4)
    v_acc = k.valloc(16, 4)
    L_end = k.label()
    k.e('s_cmp_ge_u32', 's2', 256)
    k.e('s_cbranch_scc1', L_end)
    if DIAG:
        k.stamp_init()
        k.stamp()
    k.e('s_load_dwordx2', s(S_T, 2), 's[0:1]', KA_WS)
    k.e('v_lshrrev_b32', v(v_t), 6, 'v0')
    k.e('v_and_b32', v(v_lane), 63, 'v0')
    k.e('v_readfirstlane_b32', s(s_w), v(v_t))
    k.e('v_lshlrev_b32', v(v_l16), 4, v(v_lane))
    k.e('v_lshlrev_b32', v(v_t32), 5, 'v0')
    k.e('v_lshlrev_b32', v(v_t16), 4, 'v0')
    rb_hd_decode(k, s_rb, s_hd, s_t)
    k.e('s_lshl_b32', s(s_T), s(s_rb), 2)
    k.e('s_add_u32', s(s_T), s(s_T), s(s_w))
    make_srd(k, S_WS, S_T, WS_USED)
    k.e('s_lshl_b32', s(s_t), s(s_hd), 17)
    k.e('s_add_u32', s(s_t), s(s_t), hex(KVP))
    for r in range(16):
        k.e('s_add_u32', s(s_off), s(s_t), 8192 * r)
        for h in range(2):
            k.e('buffer_load_dwordx4', v(v_p + 8 * r + 4 * h, 4), v(v_t32), s(S_WS, 4), s(s_off), mods='offen offset:%d' % (16 * h))
    k.e('s_lshl_b32', s(s_off), s(s_T), 4)
    k.e('s_add_u32', s(s_off), s(s_off), s(s_hd))
    k.e('s_lshl_b32', s(s_off), s(s_off), 12)
    k.e('s_add_u32', s(s_off), s(s_off), hex(PHIQ))
    for f in range(4):
        k.e('buffer_load_dwordx4', v(v_q + 4 * f, 4), v(v_l16), s(S_WS, 4), s(s_off), mods='offen offset:%d' % (1024 * f))
    k.stamp()
    for r in range(1, 16):
        if r == 2:
            k.stamp()
        for j in range(8):
            k.e('v_add_f32', v(v_p + j), v(v_p + j), v(v_p + 8 * r + j))
    for j in range(4):
        k.e('v_cvt_pk_bf16_f32', v(v_p + 8 + j), v(v_p + 2 * j), v(v_p + 2 * j + 1))
    k.e('ds_write_b128', v(v_t16), v(v_p + 8, 4))
    k.barrier()
    for f in range(4):
        k.e('ds_read_b128', v(v_kv + 4 * f, 4), v(v_l16), mods='offset:%d' % (1024 * f))
    for f in range(4):
        k.e(MF32, v(v_acc, 16), v(v_kv + 4 * f, 4), v(v_q + 4 * f, 4), v(v_acc, 16) if f else '0')
    k.e('v_mov_b32', v(v_t), v(v_acc + 12))
    k.e('v_mov_b32', v(v_den), v(v_acc + 12))
    k.e('v_permlane32_swap_b32', v(v_t), v(v_den))
    bf16_round(k, v_den, v_den)
    k.e('v_add_f32', v(v_den), f32(1e-6), v(v_den))
    bf16_round(k, v_den, v_den)
    k.e('v_rcp_f32', v(v_den), v(v_den))
    for i in range(16):
        k.e('v_mul_f32', v(v_acc + i), v(v_acc + i), v(v_den))
    for i in range(8):
        k.e('v_cvt_pk_bf16_f32', v(v_kv + i), v(v_acc + 2 * i), v(v_acc + 2 * i + 1))
    k.e('s_lshl_b32', s(s_off), s(s_T), 4)
    k.e('s_add_u32', s(s_off), s(s_off), s(s_hd))
    k.e('s_lshl_b32', s(s_off), s(s_off), 11)
    k.e('s_add_u32', s(s_off), s(s_off), hex(OF))
    for u in range(2):
        k.e('buffer_store_dwordx4', v(v_kv + 4 * u, 4), v(v_l16), s(S_WS, 4), s(s_off), mods='offen offset:%d' % (1024 * u))
    k.stamp()
    k.stamp_store(S_WS, DIAGB + 0x20000 * 2, v_t, v_lane, s_t)
    k.place(L_end, pad=False)
    k.e('s_endpgm')
    return k


def gen_splitk(name, nks, WB, AB, depth, final):
    per = nks // 4
    k = Kernel(name, lds=49152, grid=224, block=256)
    k._snext = 4
    S_WS = k.salloc(4, 4)
    S_IO = k.salloc(4, 4)
    S_T = k.salloc(2, 2)
    S_T2 = k.salloc(2, 2)
    s_rt, s_ct, s_w, s_t, s_off, s_T, s_C = [k.salloc() for _ in range(7)]
    s_ab = [k.salloc() for _ in range(4)]
    k._vnext = 1
    v_lane, v_l16, v_t, v_row, v_hi, v_io, v_s1, v_s2 = [k.valloc() for _ in range(8)]
    v_res = k.valloc(8, 4)
    v_acc = k.valloc(64, 4)
    v_f = k.valloc(16 * depth, 4)
    L_end = k.label()
    k.e('s_cmp_ge_u32', 's2', 224)
    k.e('s_cbranch_scc1', L_end)
    if DIAG:
        k.stamp_init()
        k.stamp()
    k.e('s_load_dwordx2', s(S_T, 2), 's[0:1]', KA_WS)
    k.e('s_load_dwordx2', s(S_T2, 2), 's[0:1]', KA_OUT if final else KA_X)
    k.e('v_lshrrev_b32', v(v_t), 6, 'v0')
    k.e('v_and_b32', v(v_lane), 63, 'v0')
    k.e('v_readfirstlane_b32', s(s_w), v(v_t))
    k.e('v_lshlrev_b32', v(v_l16), 4, v(v_lane))
    k.e('s_and_b32', s(s_rt), 's2', 7)
    k.e('s_lshl_b32', s(s_rt), s(s_rt), 2)
    k.e('s_bfe_u32', s(s_t), 's2', hex((2 << 16) | 3))
    k.e('s_add_u32', s(s_rt), s(s_rt), s(s_t))
    k.e('s_lshr_b32', s(s_ct), 's2', 5)
    k.e('s_lshr_b32', s(s_t), s(s_w), 1)
    k.e('s_lshl_b32', s(s_C), s(s_ct), 1)
    k.e('s_add_u32', s(s_C), s(s_C), s(s_t))
    k.e('s_and_b32', s(s_t), s(s_w), 1)
    k.e('s_lshl_b32', s(s_T), s(s_rt), 1)
    k.e('s_add_u32', s(s_T), s(s_T), s(s_t))
    k.e('s_mul_i32', s(s_t), s(s_w), per * 1024)
    for i, (src, base) in enumerate(((s_C, WB), (s_C, WB), (s_T, AB), (s_T, AB))):
        if i & 1:
            k.e('s_xor_b32', s(s_off), s(src), 1)
            k.e('s_mul_i32', s(s_ab[i]), s(s_off), nks * 1024)
        else:
            k.e('s_mul_i32', s(s_ab[i]), s(src), nks * 1024)
        k.e('s_add_u32', s(s_ab[i]), s(s_ab[i]), s(s_t))
        k.e('s_add_u32', s(s_ab[i]), s(s_ab[i]), hex(base))
    make_srd(k, S_WS, S_T, WS_USED)
    make_srd(k, S_IO, S_T2, 2048 * 896)

    def issue(ks):
        slot = ks % depth
        for i in range(4):
            k.e('buffer_load_dwordx4', v(v_f + 16 * slot + 4 * i, 4), v(v_l16), s(S_WS, 4), s(s_ab[i]), mods='offen offset:%d' % (1024 * (ks & 3)))
        if (ks & 3) == 3:
            for i in range(4):
                k.e('s_add_u32', s(s_ab[i]), s(s_ab[i]), 4096)

    for ks in range(min(depth, per)):
        issue(ks)
    k.e('v_and_b32', v(v_row), 31, v(v_lane))
    k.e('v_lshrrev_b32', v(v_hi), 5, v(v_lane))
    k.e('s_lshl_b32', s(s_t), s(s_T), 5)
    k.e('v_add_u32', v(v_t), s(s_t), v(v_row))
    k.e('v_mul_u32_u24', v(v_io), 896, v(v_t))
    k.e('s_lshl_b32', s(s_t), s(s_C), 6)
    k.e('v_add_u32', v(v_io), s(s_t), v(v_io))
    if not final:
        k.e('v_lshl_add_u32', v(v_io), v(v_hi), 3, v(v_io))
        for g in range(4):
            k.e('buffer_load_dwordx2', v(v_res + 2 * g, 2), v(v_io), s(S_IO, 4), 0, mods='offen offset:%d' % (16 * g))
    else:
        k.e('v_lshl_add_u32', v(v_io), v(v_hi), 4, v(v_io))
        k.e('s_mul_i32', s(s_off), s(s_T), 28)
        k.e('s_lshl_b32', s(s_t), s(s_C), 1)
        k.e('s_add_u32', s(s_off), s(s_off), s(s_t))
        k.e('s_lshl_b32', s(s_off), s(s_off), 10)
        k.e('s_add_u32', s(s_off), s(s_off), hex(HF))
        for u in range(2):
            k.e('buffer_load_dwordx4', v(v_res + 4 * u, 4), v(v_l16), s(S_WS, 4), s(s_off), mods='offen offset:%d' % (1024 * u))
    k.stamp()
    for ks in range(per):
        slot = ks % depth
        fb = v_f + 16 * slot
        if ks == 1:
            k.stamp()
        for i in range(4):
            k.e(MF32, v(v_acc + 16 * i, 16), v(fb + 4 * (i >> 1), 4), v(fb + 8 + 4 * (i & 1), 4), v(v_acc + 16 * i, 16) if ks else '0')
        if ks + depth < per:
            issue(ks + depth)
    k.stamp()
    for i in range(1, 4):
        k.e('s_xor_b32', s(s_t), s(s_w), i)
        k.e('s_mul_i32', s(s_t), s(s_t), 12288)
        k.e('s_add_u32', s(s_t), s(s_t), 4096 * (i - 1))
        k.e('v_add_u32', v(v_t), s(s_t), v(v_l16))
        for g in range(4):
            k.e('ds_write_b128', v(v_t), v(v_acc + 16 * i + 4 * g, 4), mods='offset:%d' % (1024 * g))
    k.barrier()
    k.e('s_mul_i32', s(s_t), s(s_w), 12288)
    k.e('v_add_u32', v(v_t), s(s_t), v(v_l16))
    for i in range(3):
        for g in range(4):
            k.e('ds_read_b128', v(v_f + 16 * i + 4 * g, 4), v(v_t), mods='offset:%d' % (4096 * i + 1024 * g))
    for i in range(3):
        for r in range(16):
            k.e('v_add_f32', v(v_acc + r), v(v_acc + r), v(v_f + 16 * i + r))
    v_y = v_f
    v_o = v_f + 16
    for i in range(8):
        k.e('v_cvt_pk_bf16_f32', v(v_y + i), v(v_acc + 2 * i), v(v_acc + 2 * i + 1))
    for i in range(8):
        k.e('v_lshlrev_b32', v(v_acc + 2 * i), 16, v(v_y + i))
        k.e('v_and_b32', v(v_acc + 2 * i + 1), '0xffff0000', v(v_y + i))
        k.e('v_lshlrev_b32', v(v_acc + 16 + 2 * i), 16, v(v_res + i))
        k.e('v_and_b32', v(v_acc + 16 + 2 * i + 1), '0xffff0000', v(v_res + i))
    for r in range(16):
        k.e('v_add_f32', v(v_acc + r), v(v_acc + r), v(v_acc + 16 + r))
    for i in range(8):
        k.e('v_cvt_pk_bf16_f32', v(v_o + i), v(v_acc + 2 * i), v(v_acc + 2 * i + 1))
    if not final:
        k.e('s_mul_i32', s(s_off), s(s_T), 28)
        k.e('s_lshl_b32', s(s_t), s(s_C), 1)
        k.e('s_add_u32', s(s_off), s(s_off), s(s_t))
        k.e('s_lshl_b32', s(s_off), s(s_off), 10)
        k.e('s_add_u32', s(s_off), s(s_off), hex(HF))
        for u in range(2):
            k.e('buffer_store_dwordx4', v(v_o + 4 * u, 4), v(v_l16), s(S_WS, 4), s(s_off), mods='offen offset:%d' % (1024 * u))
        s_ones = s_ab[0]
        k.e('s_mov_b32', s(s_ones), '0x3f803f80')
        k.e('v_mov_b32', v(v_s1), 0)
        k.e('v_mov_b32', v(v_s2), 0)
        for i in range(8):
            k.e('v_dot2_f32_bf16', v(v_s1), v(v_o + i), s(s_ones), v(v_s1))
        for i in range(8):
            k.e('v_dot2_f32_bf16', v(v_s2), v(v_o + i), v(v_o + i), v(v_s2))
        swap_op(k, 'v_add_f32', v_s1, v_t)
        swap_op(k, 'v_add_f32', v_s2, v_t)
        k.e('v_mov_b32', v(v_acc), v(v_s1))
        k.e('v_mov_b32', v(v_acc + 1), v(v_s2))
        k.e('v_lshlrev_b32', v(v_t), 3, v(v_row))
        k.e('v_mov_b32', v(v_io), hex(OOB))
        k.e('v_cmp_eq_u32', 'vcc', 0, v(v_hi))
        k.e('v_cndmask_b32', v(v_t), v(v_io), v(v_t), 'vcc')
        k.e('s_lshl_b32', s(s_off), s(s_C), 14)
        k.e('s_lshl_b32', s(s_t), s(s_T), 8)
        k.e('s_add_u32', s(s_off), s(s_off), s(s_t))
        k.e('s_add_u32', s(s_off), s(s_off), hex(STATS))
        k.e('buffer_store_dwordx2', v(v_acc, 2), v(v_t), s(S_WS, 4), s(s_off), mods='offen')
    else:
        for gp in range(2):
            b = v_o + 4 * gp
            k.e('v_permlane32_swap_b32', v(b), v(b + 2))
            k.e('v_permlane32_swap_b32', v(b + 1), v(b + 3))
        for gp in range(2):
            k.e('buffer_store_dwordx4', v(v_o + 4 * gp, 4), v(v_io), s(S_IO, 4), 0, mods='offen offset:%d' % (32 * gp))
    k.stamp()
    k.stamp_store(S_WS, DIAGB + 0x20000 * (5 if final else 3), v_t, v_lane, s_t)
    k.place(L_end, pad=False)
    k.e('s_endpgm')
    return k


def gen_k3():
    NSLOT = 5
    L_CS = NSLOT * 28672
    k = Kernel('gateup_kernel', lds=L_CS + 896, grid=256, block=256)
    k._snext = 4
    S_WS = k.salloc(4, 4)
    S_T = k.salloc(2, 2)
    s_rb, s_fg, s_w, s_t, s_wb, s_off, s_T, s_lb, s_c0, s_c1, s_hh = [k.salloc() for _ in range(11)]
    k._vnext = 1
    v_lane, v_l16, v_t, v_row, v_hi, v_a, v_b, v_rs, v_nm, v_csa = [k.valloc() for _ in range(10)]
    v_ad = [k.valloc() for _ in range(3)]
    v_h = k.valloc(112, 4)
    v_w = k.valloc(32, 4)
    v_acc = k.valloc(16, 4)
    v_cs = k.valloc(16, 4)
    v_st = k.valloc(16, 4)
    v_e = k.valloc(16, 4)
    v_o = k.valloc(4, 4)
    L_end = k.label()
    k.e('s_cmp_ge_u32', 's2', 256)
    k.e('s_cbranch_scc1', L_end)
    if DIAG:
        k.stamp_init()
        k.stamp()
    k.e('s_load_dwordx2', s(S_T, 2), 's[0:1]', KA_WS)
    k.e('v_lshrrev_b32', v(v_t), 6, 'v0')
    k.e('v_and_b32', v(v_lane), 63, 'v0')
    k.e('v_readfirstlane_b32', s(s_w), v(v_t))
    k.e('v_lshlrev_b32', v(v_l16), 4, v(v_lane))
    k.e('s_and_b32', s(s_rb), 's2', 1)
    k.e('s_lshl_b32', s(s_rb), s(s_rb), 3)
    k.e('s_bfe_u32', s(s_t), 's2', hex((3 << 16) | 3))
    k.e('s_add_u32', s(s_rb), s(s_rb), s(s_t))
    k.e('s_bfe_u32', s(s_fg), 's2', hex((2 << 16) | 1))
    k.e('s_lshl_b32', s(s_fg), s(s_fg), 2)
    k.e('s_lshr_b32', s(s_t), 's2', 6)
    k.e('s_add_u32', s(s_fg), s(s_fg), s(s_t))
    k.e('s_lshl_b32', s(s_T), s(s_rb), 2)
    k.e('s_add_u32', s(s_T), s(s_T), s(s_w))
    k.e('s_mul_i32', s(s_lb), s(s_w), 7168)
    k.e('s_mul_i32', s(s_wb), s(s_fg), 7 * 28672)
    k.e('s_add_u32', s(s_wb), s(s_wb), s(s_lb))
    k.e('s_add_u32', s(s_wb), s(s_wb), hex(WGU))
    make_srd(k, S_WS, S_T, WS_USED)

    def dma(j):
        slot = j % NSLOT
        for half, cnt in ((0, 4), (1, 3)):
            k.e('s_add_u32', 'm0', s(s_lb), slot * 28672 + 4096 * half)
            k.e('s_add_u32', s(s_off), s(s_wb), j * 28672 + 4096 * half)
            for i in range(cnt):
                k.e('buffer_load_dwordx4', v(v_l16), s(S_WS, 4), s(s_off), mods='offen offset:%d lds' % (1024 * i), tag='t%d' % j)

    dma(0)
    k.e('v_and_b32', v(v_row), 31, v(v_lane))
    k.e('v_lshrrev_b32', v(v_hi), 5, v(v_lane))
    k.e('v_mul_u32_u24', v(v_a), 7 * 16384, v(v_hi))
    k.e('v_lshl_add_u32', v(v_a), v(v_row), 3, v(v_a))
    k.e('s_lshl_b32', s(s_t), s(s_T), 8)
    k.e('s_add_u32', s(s_t), s(s_t), hex(STATS))
    for i in range(7):
        k.e('s_add_u32', s(s_off), s(s_t), 16384 * i)
        k.e('buffer_load_dwordx2', v(v_st + 2 * i, 2), v(v_a), s(S_WS, 4), s(s_off), mods='offen')
    k.e('v_lshlrev_b32', v(v_b), 2, 'v0')
    k.e('v_mov_b32', v(v_t), hex(OOB))
    k.e('v_cmp_gt_u32', 'vcc', 224, 'v0')
    k.e('v_cndmask_b32', v(v_a), v(v_t), v(v_b), 'vcc')
    k.e('s_mul_i32', s(s_t), s(s_fg), 896)
    k.e('s_add_u32', s(s_t), s(s_t), hex(CS))
    for q in range(4):
        k.e('s_add_u32', s(s_off), s(s_t), 112 * 128 * q)
        k.e('buffer_load_dword', v(v_cs + q), v(v_a), s(S_WS, 4), s(s_off), mods='offen')
    k.e('s_mul_i32', s(s_t), s(s_T), 28672)
    k.e('s_add_u32', s(s_t), s(s_t), hex(HF))
    for ks in range(28):
        if (ks & 3) == 0:
            k.e('s_add_u32', s(s_off), s(s_t), 1024 * ks)
        k.e('buffer_load_dwordx4', v(v_h + 4 * ks, 4), v(v_l16), s(S_WS, 4), s(s_off), mods='offen offset:%d' % (1024 * (ks & 3)))
    dma(1)
    dma(2)
    k.e('v_add_f32', v(v_cs), v(v_cs), v(v_cs + 1))
    k.e('v_add_f32', v(v_cs + 2), v(v_cs + 2), v(v_cs + 3))
    k.e('v_add_f32', v(v_cs), v(v_cs), v(v_cs + 2))
    k.e('s_and_saveexec_b64', s(S_T, 2), 'vcc')
    k.e('v_add_u32', v(v_b), L_CS, v(v_b))
    k.e('ds_write_b32', v(v_b), v(v_cs))
    k.e('s_mov_b64', 'exec', s(S_T, 2))
    for i in range(1, 7):
        k.e('v_add_f32', v(v_st), v(v_st), v(v_st + 2 * i))
        k.e('v_add_f32', v(v_st + 1), v(v_st + 1), v(v_st + 2 * i + 1))
    swap_op(k, 'v_add_f32', v_st, v_t)
    swap_op(k, 'v_add_f32', v_st + 1, v_t)
    k.e('v_mul_f32', v(v_nm), f32(1.0 / 448), v(v_st))
    k.e('v_mul_f32', v(v_rs), f32(1.0 / 448), v(v_st + 1))
    k.e('v_fma_f32', v(v_rs), '-' + v(v_nm), v(v_nm), v(v_rs))
    k.e('v_max_f32', v(v_rs), 0, v(v_rs))
    bf16_round(k, v_rs, v_rs)
    k.e('v_add_f32', v(v_rs), f32(1e-5), v(v_rs))
    bf16_round(k, v_rs, v_rs)
    k.e('v_sqrt_f32', v(v_rs), v(v_rs))
    bf16_round(k, v_rs, v_rs)
    k.e('v_rcp_f32', v(v_rs), v(v_rs))
    bf16_round(k, v_nm, v_nm)
    k.e('v_mul_f32', v(v_nm), v(v_nm), v(v_rs))
    k.e('v_sub_f32', v(v_nm), 0, v(v_nm))
    dma(3)
    dma(4)
    k.e('v_lshlrev_b32', v(v_csa), 4, v(v_hi))
    k.e('v_add_u32', v(v_csa), L_CS, v(v_csa))
    for i in range(3):
        k.e('v_add_u32', v(v_ad[i]), 57344 * i, v(v_l16))
    c0 = -2.0 * 0.7978845608028654 * LOG2E
    k.e('s_mov_b32', s(s_c0), f32(c0))
    k.e('s_mov_b32', s(s_c1), f32(c0 * 0.044715))
    k.e('s_mul_i32', s(s_hh), s(s_T), 112)
    k.e('s_mul_i32', s(s_t), s(s_fg), 7)
    k.e('s_add_u32', s(s_hh), s(s_hh), s(s_t))
    k.e('s_lshl_b32', s(s_hh), s(s_hh), 10)
    k.e('s_add_u32', s(s_hh), s(s_hh), hex(HH))
    for j in range(7):
        slot = j % NSLOT
        k.wait_tag('t%d' % j)
        k.barrier()
        if j in (0, 1, 2, 4):
            k.stamp()
        if j >= 1 and j - 1 + NSLOT < 7:
            dma(j - 1 + NSLOT)
        ad = v_ad[slot >> 1]
        base = (slot & 1) * 28672
        for g in range(4):
            k.e('ds_read_b128', v(v_cs + 4 * g, 4), v(v_csa), mods='offset:%d' % (128 * j + 32 * g))
        NB = 8
        for ks in range(min(NB, 28)):
            k.e('ds_read_b128', v(v_w + 4 * (ks % NB), 4), v(ad), mods='offset:%d' % (base + 1024 * ks))
        for ks in range(28):
            k.e(MF32, v(v_acc, 16), v(v_w + 4 * (ks % NB), 4), v(v_h + 4 * ks, 4), v(v_acc, 16) if ks else '0')
            if ks + NB < 28:
                k.e('ds_read_b128', v(v_w + 4 * (ks % NB), 4), v(ad), mods='offset:%d' % (base + 1024 * (ks + NB)))
        for r in range(16):
            k.e('v_mul_f32', v(v_cs + r), v(v_cs + r), v(v_nm))
        for r in range(16):
            k.e('v_fma_f32', v(v_cs + r), v(v_acc + r), v(v_rs), v(v_cs + r))
        for r in range(8):
            k.e('v_mul_f32', v(v_e + r), v(v_cs + r), v(v_cs + r))
        k.e('v_mov_b32', v(v_e + 8), s(s_c0))
        for r in range(8):
            g_, e_ = v_cs + r, v_e + r
            k.e('v_fma_f32', v(e_), v(e_), s(s_c1), v(v_e + 8))
            k.e('v_mul_f32', v(e_), v(e_), v(g_))
        for r in range(8):
            k.e('v_exp_f32', v(v_e + r), v(v_e + r))
        for r in range(8):
            k.e('v_add_f32', v(v_e + r), '1.0', v(v_e + r))
        for r in range(8):
            k.e('v_rcp_f32', v(v_e + r), v(v_e + r))
        for r in range(8):
            k.e('v_mul_f32', v(v_cs + r), v(v_cs + r), v(v_cs + 8 + r))
        for r in range(8):
            k.e('v_mul_f32', v(v_cs + r), v(v_cs + r), v(v_e + r))
        for i in range(4):
            k.e('v_cvt_pk_bf16_f32', v(v_o + i), v(v_cs + 2 * i), v(v_cs + 2 * i + 1))
        k.e('s_add_u32', s(s_off), s(s_hh), 1024 * j)
        k.e('buffer_store_dwordx4', v(v_o, 4), v(v_l16), s(S_WS, 4), s(s_off), mods='offen')
    k.stamp()
    k.stamp_store(S_WS, DIAGB + 0x20000 * 4, v_t, v_lane, s_t)
    k.place(L_end, pad=False)
    k.e('s_endpgm')
    return k


def main():
    ref = open(os.path.join(os.path.dirname(os.path.abspath(__file__)), '..', 'cdna_kernels', NAME + '.s.ref')).read().splitlines()
    header = [l for l in ref if l.startswith(';') and '@launch' not in l and 'Override launch' not in l and 'grid=ceil' not in l]
    ks = [gen_k0(), gen_k1a(), gen_k1b(), gen_splitk('wo_kernel', 32, WO, OF, 8, False), gen_k3(),
          gen_splitk('down_kernel', 112, WD, HH, 10, True)]
    txt = build_file(header, ks, ks)
    out = sys.argv[1] if len(sys.argv) > 1 else os.path.join(os.path.dirname(os.path.abspath(__file__)), '..', 'cdna_kernels', NAME + '.s')
    open(out, 'w').write(txt)
    for k in ks:
        print(k.name, 'vgpr', k.maxv, 'sgpr', k.maxs, 'ins', len(k.ins), 'lds', k.lds)


if __name__ == '__main__':
    main()
```

```python
import sys, os, struct
sys.path.insert(0, os.path.dirname(os.path.abspath(__file__)))
from asmlib import *
import gen_v1 as g1
from gen_v1 import (NAME, f32, bf16_round, swap_op, LOG2E, MF32, MF16, OOB, KVP, OF, HF, STATS, HH, DIAGB, WS_USED)

DIAG = bool(os.environ.get('DIAG'))
CNT = 0x1580000
CSW = 0x15A0000
SPIN_MAX = 1 << 22

SLOT = 24576
L_WPHI = 147456
L_CSX = 149504
L_KVF = 152576
CH = 28800
L_S = 3 * CH
L_PHIK = L_S
L_V = L_PHIK + 128 * 136
L_WQ = 115200
L_WOT = L_S
L_RED = L_S
L_CS3 = 156672


class G:
    pass


def srd(k, sd, ptr, nbytes):
    k.e('s_mov_b32', s(sd), s(ptr))
    k.e('s_and_b32', s(sd + 1), s(ptr + 1), '0xffff')
    k.e('s_mov_b32', s(sd + 2), hex(nbytes))
    k.e('s_mov_b32', s(sd + 3), '0x20000')


def softmax_pm(k, p, outp, outm, tmp, v_mask, s_l2e):
    g1.softmax_pm(k, p, outp, outm, tmp, v_mask, s_l2e)


def gen_mega(last_phase=4):
    k = Kernel('mega_kernel', lds=163840, grid=256, block=256)
    s_w, s_rb, s_m, s_t, s_u, s_off, s_a, s_b, s_c, s_d, s_e, s_f = range(4, 16)
    P0 = 16
    SX, SWQ, SPH, SWO, SGU, SWD, SOUT, SDBG, SWS = [40 + 4 * i for i in range(9)]
    k.maxs = 76
    s_l2e, s_ones, s_hi10, s_hi01, s_T, s_c1, s_c2, s_xrow, s_wb, s_rh, s_cg, s_C, s_T2 = range(16, 29)
    S_E = 30
    S_HI = 32
    s_n = 34
    s_c0, s_cc1 = 35, 36
    k._vnext = 1
    v_lane, v_l16, v_row, v_hi, v_mask, v_t, v_u, v_z = [k.valloc() for _ in range(8)]
    v_s1, v_s2, v_csk, v_csv, v_csq, v_rs, v_nm = [k.valloc() for _ in range(7)]
    v_x = k.valloc(112, 4)
    v_acc = k.valloc(48, 4)
    v_w = k.valloc(32, 4)
    v_XA = k.valloc(4)
    v_WA = k.valloc(4)
    v_voX = k.valloc(2)
    v_voW = k.valloc()
    v_a, v_b, v_cso = k.valloc(), k.valloc(), k.valloc()
    v_big = k.valloc(32, 4)
    a_st = k.aalloc(52, 4)

    L_end = k.label()
    k.e('s_cmp_ge_u32', 's2', 256)
    k.e('s_cbranch_scc1', L_end)
    if DIAG:
        only = os.environ.get('STAMPS')
        k.stamp_init(12, None if not only else set(int(x) for x in only.split(',')))
        k.stamp()
    k.e('s_load_dwordx16', s(P0, 16), 's[0:1]', 0)
    k.e('s_load_dwordx4', s(P0 + 16, 4), 's[0:1]', 64)
    k.e('s_load_dwordx2', s(P0 + 20, 2), 's[0:1]', 80)
    k.e('v_lshrrev_b32', v(v_t), 6, 'v0')
    k.e('v_and_b32', v(v_lane), 63, 'v0')
    k.e('v_readfirstlane_b32', s(s_w), v(v_t))
    k.e('v_lshlrev_b32', v(v_l16), 4, v(v_lane))
    k.e('v_and_b32', v(v_row), 31, v(v_lane))
    k.e('v_lshrrev_b32', v(v_hi), 5, v(v_lane))
    k.e('v_mov_b32', v(v_z), 0)
    k.e('s_and_b32', s(s_rb), 's2', 7)
    k.e('s_lshl_b32', s(s_rb), s(s_rb), 1)
    k.e('s_lshr_b32', s(s_t), 's2', 7)
    k.e('s_add_u32', s(s_rb), s(s_rb), s(s_t))
    k.e('s_bfe_u32', s(s_m), 's2', hex((4 << 16) | 3))
    k.e('v_lshrrev_b32', v(v_t), 3, v(v_lane))
    k.e('v_mul_u32_u24', v(v_a), 896, v(v_t))
    k.e('v_lshrrev_b32', v(v_t), 4, v(v_lane))
    k.e('v_and_b32', v(v_u), 7, v(v_lane))
    k.e('v_xor_b32', v(v_u), v(v_u), v(v_t))
    k.e('v_lshl_add_u32', v(v_voX), v(v_u), 4, v(v_a))
    k.e('v_xor_b32', v(v_u), 4, v(v_u))
    k.e('v_lshl_add_u32', v(v_voX + 1), v(v_u), 4, v(v_a))
    k.e('v_lshrrev_b32', v(v_t), 2, v(v_lane))
    k.e('v_mul_u32_u24', v(v_voW), 2688, v(v_t))
    k.e('v_and_b32', v(v_u), 3, v(v_lane))
    k.e('v_lshlrev_b32', v(v_u), 4, v(v_u))
    k.e('v_min_u32', v(v_u), 40, v(v_u))
    k.e('v_add_u32', v(v_voW), v(v_voW), v(v_u))
    srd(k, SX, P0 + 0, 2048 * 896)
    srd(k, SWQ, P0 + 2, 448 * 2688)
    srd(k, SPH, P0 + 4, 16 * 1568)
    srd(k, SWO, P0 + 6, 448 * 896)
    k.e('s_cmp_lt_u32', s(s_w), 2)
    k.e('s_cselect_b32', s(P0 + 8), s(P0 + 10), s(P0 + 12))
    k.e('s_cselect_b32', s(P0 + 9), s(P0 + 11), s(P0 + 13))
    srd(k, SGU, P0 + 8, 448 * 3584)
    srd(k, SWD, P0 + 14, 1792 * 896)
    srd(k, SOUT, P0 + 16, 2048 * 896)
    srd(k, SDBG, P0 + 18, 256)
    srd(k, SWS, P0 + 20, WS_USED)
    k.e('s_lshl_b32', s(s_T), s(s_rb), 2)
    k.e('s_add_u32', s(s_T), s(s_T), s(s_w))
    k.e('s_mul_i32', s(s_xrow), s(s_T), 32 * 896)
    k.e('s_mul_i32', s(s_wb), s(s_w), 16 * 2688)
    k.e('s_mul_i32', s(s_t), s(s_m), 56)
    k.e('s_add_u32', s(s_wb), s(s_wb), s(s_t))
    k.e('s_lshl_b32', s(s_c1), s(s_m), 8)
    k.e('s_add_u32', s(s_c1), s(s_c1), hex(CNT))
    k.e('s_lshl_b32', s(s_c2), s(s_rb), 8)
    k.e('s_add_u32', s(s_c2), s(s_c2), hex(CNT + 0x1000))
    k.e('s_lshl_b32', s(s_a), s(s_w), 12)
    k.e('s_lshl_b32', s(s_b), s(s_w), 10)

    def owner_store(val_reg, what):
        L1, L2 = k.label(), k.label()
        k.e('s_cmp_lg_u32', s(s_w), 0)
        k.e('s_cbranch_scc1', L2)
        k.e('s_mov_b64', s(S_E, 2), 'exec')
        k.e('s_mov_b64', 'exec', 15 if what == 'zero' else 1)
        k.e('s_cmp_lg_u32', s(s_rb), 0)
        k.e('s_cbranch_scc1', L1)
        if what == 'zero':
            k.e('v_lshlrev_b32', v(v_u), 2, v(v_lane))
            raw(k, 'buffer_store_dword %s, %s, %s, %s offen sc1' % (v(val_reg), v(v_u), s(SWS, 4), s(s_c1)))
        else:
            k.e('s_lshl_b32', s(s_t), s(s_m), 2)
            raw(k, 'buffer_store_dword %s, off, %s, %s sc1' % (v(val_reg), s(SDBG, 4), s(s_t)))
        k.place(L1, pad=False)
        L3 = k.label()
        k.e('s_cmp_lg_u32', s(s_m), 0)
        k.e('s_cbranch_scc1', L3)
        if what == 'zero':
            k.e('v_lshlrev_b32', v(v_u), 2, v(v_lane))
            raw(k, 'buffer_store_dword %s, %s, %s, %s offen sc1' % (v(val_reg), v(v_u), s(SWS, 4), s(s_c2)))
        else:
            k.e('s_lshl_b32', s(s_t), s(s_rb), 2)
            raw(k, 'buffer_store_dword %s, off, %s, %s offset:64 sc1' % (v(val_reg), s(SDBG, 4), s(s_t)))
        k.place(L3, pad=False)
        k.e('s_mov_b64', 'exec', s(S_E, 2))
        k.place(L2, pad=False)

    owner_store(v_z, 'zero')

    PART = [896, 1792, 0]
    for ph in range(7):
        for i in range(4):
            k.e('s_add_u32', s(s_off), s(s_xrow), 8 * i * 896 + 128 * ph)
            if ph < 6:
                k.e('s_add_u32', 'm0', s(s_a), ph * SLOT + 1024 * i)
                k.e('buffer_load_dwordx4', v(v_voX + (i & 1)), s(SX, 4), s(s_off), mods='offen lds', tag='ph%d' % ph)
            else:
                k.e('buffer_load_dwordx4', a(a_st + 4 * i, 4), v(v_voX + (i & 1)), s(SX, 4), s(s_off), mods='offen')
        for p in range(2):
            k.e('s_add_u32', s(s_off), s(s_wb), 64 * ph * 2688 + PART[p])
            if ph < 6:
                k.e('s_add_u32', 'm0', s(s_b), ph * SLOT + 16384 + 4096 * p)
                k.e('buffer_load_dwordx4', v(v_voW), s(SWQ, 4), s(s_off), mods='offen lds', tag='ph%d' % ph)
            else:
                k.e('buffer_load_dwordx4', a(a_st + 16 + 4 * p, 4), v(v_voW), s(SWQ, 4), s(s_off), mods='offen')
        if ph == 0:
            k.e('s_and_b32', s(s_t), s(s_w), 1)
            k.e('s_lshl_b32', s(s_t), s(s_t), 10)
            k.e('s_add_u32', 'm0', s(s_t), L_WPHI)
            k.e('s_mul_i32', s(s_off), s(s_m), 1568)
            k.e('s_add_u32', s(s_off), s(s_off), s(s_t))
            k.e('buffer_load_dwordx4', v(v_l16), s(SPH, 4), s(s_off), mods='offen lds', tag='ph0')
    for ph in range(7):
        k.e('s_add_u32', s(s_off), s(s_wb), 64 * ph * 2688 + PART[2])
        k.e('buffer_load_dwordx4', a(a_st + 24 + 4 * ph, 4), v(v_voW), s(SWQ, 4), s(s_off), mods='offen')

    k.e('s_mov_b32', s(s_l2e), f32(LOG2E))
    k.e('s_mov_b32', s(s_ones), '0x3f803f80')
    k.e('s_mov_b32', s(s_hi10), '0x00003f80')
    k.e('s_mov_b32', s(s_hi01), '0x3f800000')
    k.e('v_cmp_eq_u32', s(S_HI, 2), 0, v(v_hi))
    k.e('v_cndmask_b32', v(v_mask), 0, '1.0', s(S_HI, 2))
    k.e('v_bfe_u32', v(v_t), v(v_row), 1, 3)
    k.e('v_xor_b32', v(v_t), v(v_t), v(v_hi))
    k.e('v_lshlrev_b32', v(v_t), 4, v(v_t))
    k.e('v_lshl_add_u32', v(v_t), v(v_row), 7, v(v_t))
    k.e('v_add_u32', v(v_t), s(s_a), v(v_t))
    k.e('v_bfe_u32', v(v_u), v(v_lane), 2, 2)
    k.e('v_lshl_add_u32', v(v_u), v(v_hi), 3, v(v_u))
    k.e('v_lshlrev_b32', v(v_u), 6, v(v_u))
    k.e('v_and_b32', v(v_a), 3, v(v_lane))
    k.e('v_bfe_u32', v(v_b), v(v_lane), 4, 1)
    k.e('v_lshl_add_u32', v(v_a), v(v_b), 2, v(v_a))
    k.e('v_xor_b32', v(v_b), 1, v(v_a))
    k.e('v_cmp_lt_u32', 'vcc', 5, v(v_a))
    k.e('v_cndmask_b32', v(v_a), v(v_a), v(v_b), 'vcc')
    k.e('v_lshl_add_u32', v(v_u), v(v_a), 3, v(v_u))
    for i in range(4):
        k.e('s_add_u32', s(s_t), s(s_w), i)
        k.e('s_and_b32', s(s_t), s(s_t), 3)
        k.e('s_lshl_b32', s(s_u), s(s_t), 5)
        k.e('v_xor_b32', v(v_XA + i), s(s_u), v(v_t))
        k.e('s_lshl_b32', s(s_u), s(s_t), 10)
        k.e('s_add_u32', s(s_u), s(s_u), 16384)
        k.e('v_add_u32', v(v_WA + i), s(s_u), v(v_u))
    for r in (v_s1, v_s2, v_csk, v_csv, v_csq):
        k.e('v_mov_b32', v(r), 0)

    abase = 0
    for ph in range(7):
        slot = (ph % 6) * SLOT
        if ph < 6:
            k.wait_tag('ph%d' % ph)
        k.barrier()
        if ph == 0:
            k.stamp()
            k.e('v_mov_b32', v(v_b), 1)
            owner_store(v_b, 'flag')
        want = (slot // 49152) * 49152
        if want != abase:
            d = want - abase
            for i in range(4):
                if d > 0:
                    k.e('v_add_u32', v(v_XA + i), d, v(v_XA + i))
                    k.e('v_add_u32', v(v_WA + i), d, v(v_WA + i))
                else:
                    k.e('v_subrev_u32', v(v_XA + i), -d, v(v_XA + i))
                    k.e('v_subrev_u32', v(v_WA + i), -d, v(v_WA + i))
            abase = want
        so = slot - abase
        for i in range(4):
            k.e('ds_read_b128', v(v_x + 4 * (4 * ph + i), 4), v(v_XA + i), mods='offset:%d' % so)
            for p in range(2):
                for t in range(2):
                    k.e('ds_read_b64_tr_b16', v(v_w + 8 * i + 4 * p + 2 * t, 2), v(v_WA + i), mods='offset:%d' % (so + 4096 * p + 256 * t))
        if ph == 5:
            k.e('v_add_u32', v(v_a), s(s_a), v(v_l16))
            k.e('v_add_u32', v(v_b), s(s_b), v(v_l16))
        for i in range(4):
            xf = v_x + 4 * (4 * ph + i)
            for p in range(2):
                first = (ph == 0 and i == 0)
                k.e(MF32, v(v_acc + 16 * p, 16), v(v_w + 8 * i + 4 * p, 4), v(xf, 4), '0' if first else v(v_acc + 16 * p, 16))
                for d in range(4):
                    if p == 0:
                        k.e('v_dot2_f32_bf16', v(v_s2), v(xf + d), v(xf + d), v(v_s2))
                    else:
                        k.e('v_dot2_f32_bf16', v(v_s1), v(xf + d), s(s_ones), v(v_s1))
            if i == 0:
                for p, cs in ((0, v_csk), (1, v_csv)):
                    for d in range(4):
                        k.e('v_dot2_f32_bf16', v(cs), v(v_w + 4 * p + d), s(s_ones), v(cs))
        if ph == 5:
            for i in range(4):
                k.e('ds_write_b128', v(v_a), a(a_st + 4 * i, 4), mods='offset:%d' % (1024 * i))
            for p in range(2):
                k.e('ds_write_b128', v(v_b), a(a_st + 16 + 4 * p, 4), mods='offset:%d' % (16384 + 4096 * p))
    k.stamp()

    a_cs = a_st
    a_cs = k.aalloc(28, 4)
    k.e('v_lshlrev_b32', v(v_a), 2, v(v_lane))
    k.e('v_mov_b32', v(v_b), hex(OOB))
    k.e('v_cmp_gt_u32', 'vcc', 56, v(v_lane))
    k.e('v_cndmask_b32', v(v_cso), v(v_b), v(v_a), 'vcc')
    k.e('s_mul_i32', s(s_t), s(s_rb), 28 * 3584)
    k.e('s_mul_i32', s(s_u), s(s_m), 224)
    k.e('s_add_u32', s(s_t), s(s_t), s(s_u))
    k.e('s_and_b32', s(s_u), s(s_w), 1)
    k.e('s_mul_i32', s(s_u), s(s_u), 14 * 3584)
    k.e('s_add_u32', s(s_t), s(s_t), s(s_u))
    for i in range(14):
        k.e('s_add_u32', s(s_off), s(s_t), 3584 * i)
        k.e('buffer_load_dword', a(a_cs + i), v(v_cso), s(SGU, 4), s(s_off), mods='offen')

    def ln_stats(s1, s2):
        k.e('v_mul_f32', v(v_nm), f32(1.0 / 448), v(s1))
        k.e('v_mul_f32', v(v_rs), f32(1.0 / 448), v(s2))
        k.e('v_fma_f32', v(v_rs), '-' + v(v_nm), v(v_nm), v(v_rs))
        k.e('v_max_f32', v(v_rs), 0, v(v_rs))
        bf16_round(k, v_rs, v_rs)
        k.e('v_add_f32', v(v_rs), f32(1e-5), v(v_rs))
        bf16_round(k, v_rs, v_rs)
        k.e('v_sqrt_f32', v(v_rs), v(v_rs))
        bf16_round(k, v_rs, v_rs)
        k.e('v_rcp_f32', v(v_rs), v(v_rs))

    def cs_publish(cs, p):
        swap_op(k, 'v_add_f32', cs, v_t)
        t0, t1 = v_big, v_big + 1
        k.e('v_cvt_pk_bf16_f32', v(t0), v(cs), v(cs))
        k.e('v_lshlrev_b32', v(v_t), 16, v(t0))
        k.e('v_sub_f32', v(cs), v(cs), v(v_t))
        k.e('v_cvt_pk_bf16_f32', v(t1), v(cs), v(cs))
        k.e('v_lshlrev_b32', v(v_t), 16, v(t1))
        k.e('v_sub_f32', v(cs), v(cs), v(v_t))
        k.e('v_and_b32', v(t0), '0xffff', v(t0))
        k.e('v_or_b32', v(t0), v(t0), v(v_t))
        k.e('v_cvt_pk_bf16_f32', v(t1), v(cs), v(v_z))
        k.e('ds_write_b64', v(v_u), v(t0, 2), mods='offset:%d' % (1024 * p))

    swap_op(k, 'v_add_f32', v_s1, v_t)
    swap_op(k, 'v_add_f32', v_s2, v_t)
    k.e('s_lshl_b32', s(s_t), s(s_w), 3)
    k.e('s_add_u32', s(s_t), s(s_t), L_CSX)
    k.e('v_lshlrev_b32', v(v_u), 5, v(v_row))
    k.e('v_add_u32', v(v_u), s(s_t), v(v_u))
    cs_publish(v_csk, 0)
    cs_publish(v_csv, 1)
    ln_stats(v_s1, v_s2)
    v_mb = v_big + 4
    k.e('v_sub_f32', v(v_nm), 0, v(v_nm))
    k.e('v_cvt_pk_bf16_f32', v(v_mb), v(v_nm), v(v_nm))
    for i in range(1, 4):
        k.e('v_mov_b32', v(v_mb + i), v(v_mb))
    v_csa = v_s1
    k.e('v_lshlrev_b32', v(v_csa), 5, v(v_row))
    k.e('v_lshl_add_u32', v(v_csa), v(v_hi), 4, v(v_csa))
    k.e('v_add_u32', v(v_csa), L_CSX, v(v_csa))
    v_pha = v_s2
    k.e('v_bfe_u32', v(v_t), v(v_lane), 2, 2)
    k.e('v_lshl_add_u32', v(v_t), v(v_hi), 2, v(v_t))
    k.e('v_mul_u32_u24', v(v_pha), 56, v(v_t))
    k.e('v_and_b32', v(v_a), 3, v(v_lane))
    k.e('v_bfe_u32', v(v_b), v(v_lane), 4, 1)
    k.e('v_lshl_add_u32', v(v_a), v(v_b), 2, v(v_a))
    k.e('v_lshl_add_u32', v(v_pha), v(v_a), 3, v(v_pha))
    k.e('v_add_u32', v(v_pha), L_WPHI, v(v_pha))
    k.barrier()
    v_phi = v_big + 8
    for p in range(2):
        k.e('ds_read_b128', v(v_w + 4 * p, 4), v(v_csa), mods='offset:%d' % (1024 * p))
    for u in range(2):
        for t in range(2):
            k.e('ds_read_b64_tr_b16', v(v_phi + 4 * u + 2 * t, 2), v(v_pha), mods='offset:%d' % ((16 * u + 8 * t) * 56))
    for p in range(2):
        k.e(MF32, v(v_acc + 16 * p, 16), v(v_w + 4 * p, 4), v(v_mb, 4), v(v_acc + 16 * p, 16))
    k.e('s_lshl_b32', s(s_t), s(s_w), 5)
    k.e('v_add_u32', v(v_t), s(s_t), v(v_row))
    k.e('v_mul_u32_u24', v(v_a), 72, v(v_t))
    k.e('v_lshl_add_u32', v(v_a), v(v_hi), 3, v(v_a))
    k.e('v_add_u32', v(v_a), L_V, v(v_a))
    k.e('v_mul_u32_u24', v(v_b), 136, v(v_t))
    k.e('v_lshl_add_u32', v(v_b), v(v_hi), 3, v(v_b))
    k.e('v_add_u32', v(v_b), L_PHIK, v(v_b))

    def scale_pack(acc, dst):
        for i in range(8):
            k.e('v_pk_mul_f32', v(acc + 2 * i, 2), v(acc + 2 * i, 2), v(v_rs2, 2), mods='op_sel_hi:[1,0]')
        for i in range(8):
            k.e('v_cvt_pk_bf16_f32', v(dst + i), v(acc + 2 * i), v(acc + 2 * i + 1))

    v_rs2 = v_big + 2
    k.e('v_mov_b32', v(v_rs2), v(v_rs))
    v_kb = v_w + 8
    v_vb = v_w + 16
    v_p = v_acc + 32
    v_sc = v_acc
    v_o1 = v_big + 16

    def feature_map(src_packed, out):
        k.e('v_cndmask_b32', v(src_packed + 6), 0, v(src_packed + 6), s(S_HI, 2))
        k.e('v_cndmask_b32', v(src_packed + 7), 0, v(src_packed + 7), s(S_HI, 2))
        for u in range(2):
            k.e(MF32, v(v_p, 16), v(v_phi + 4 * u, 4), v(src_packed + 4 * u, 4), v(v_p, 16) if u else '0')

    scale_pack(v_acc, v_kb)
    feature_map(v_kb, None)
    scale_pack(v_acc + 16, v_vb)
    k.e('v_mov_b32', v(v_t), '0x3f80')
    k.e('v_cndmask_b32', v(v_vb + 6), v(v_t), v(v_vb + 6), s(S_HI, 2))
    k.e('v_cndmask_b32', v(v_vb + 7), 0, v(v_vb + 7), s(S_HI, 2))
    for g in range(4):
        k.e('ds_write_b64', v(v_a), v(v_vb + 2 * g, 2), mods='offset:%d' % (16 * g))
    for i in range(4):
        k.e('v_cndmask_b32', v(v_p + 12 + i), v(v_p + i), v(v_p + 12 + i), s(S_HI, 2))
    softmax_pm(k, v_p, v_o1, v_o1 + 8, v_sc, v_mask, s_l2e)
    for p in range(2):
        for g in range(4):
            k.e('ds_write_b64', v(v_b), v(v_o1 + 8 * p + 2 * g, 2), mods='offset:%d' % (64 * p + 16 * g))
    k.e('v_add_u32', v(v_t), s(s_b), v(v_l16))
    k.e('v_add_u32', v(v_t), L_WQ, v(v_t))
    for ph in range(7):
        k.e('ds_write_b128', v(v_t), a(a_st + 24 + 4 * ph, 4), mods='offset:%d' % (4096 * ph))
    k.barrier()
    k.stamp()
    v_af = v_acc
    v_bf = v_w
    v_kv = v_acc + 16
    k.e('v_lshrrev_b32', v(v_t), 4, v(v_lane))
    k.e('v_bfe_u32', v(v_a), v(v_lane), 2, 2)
    k.e('v_lshl_add_u32', v(v_t), v(v_t), 3, v(v_a))
    k.e('v_and_b32', v(v_u), 3, v(v_lane))
    k.e('v_mul_u32_u24', v(v_a), 136, v(v_t))
    k.e('v_lshl_add_u32', v(v_a), v(v_u), 3, v(v_a))
    k.e('s_lshl_b32', s(s_t), s(s_w), 5)
    k.e('s_add_u32', s(s_t), s(s_t), L_PHIK)
    k.e('v_add_u32', v(v_a), s(s_t), v(v_a))
    k.e('v_mul_u32_u24', v(v_b), 72, v(v_t))
    k.e('v_lshl_add_u32', v(v_b), v(v_u), 3, v(v_b))
    k.e('v_add_u32', v(v_b), L_V, v(v_b))
    for kk in range(4):
        for t in range(2):
            k.e('ds_read_b64_tr_b16', v(v_af + 4 * kk + 2 * t, 2), v(v_a), mods='offset:%d' % ((32 * kk + 4 * t) * 136))
        for dt in range(2):
            for t in range(2):
                k.e('ds_read_b64_tr_b16', v(v_bf + 16 * dt + 4 * kk + 2 * t, 2), v(v_b), mods='offset:%d' % ((32 * kk + 4 * t) * 72 + 32 * dt))
    for kk in range(4):
        for dt in range(2):
            k.e(MF16, v(v_kv + 4 * dt, 4), v(v_af + 4 * kk, 4), v(v_bf + 16 * dt + 4 * kk, 4), v(v_kv + 4 * dt, 4) if kk else '0')
    k.e('v_and_b32', v(v_a), 15, v(v_lane))
    k.e('v_bfe_u32', v(v_t), v(v_lane), 4, 1)
    k.e('v_lshl_add_u32', v(v_a), v(v_t), 5, v(v_a))
    k.e('v_lshlrev_b32', v(v_a), 4, v(v_a))
    k.e('v_lshl_add_u32', v(v_a), v(v_hi), 3, v(v_a))
    k.e('s_lshl_b32', s(s_off), s(s_m), 4)
    k.e('s_add_u32', s(s_off), s(s_off), s(s_rb))
    k.e('s_lshl_b32', s(s_off), s(s_off), 12)
    k.e('s_add_u32', s(s_off), s(s_off), s(s_b))
    k.e('s_add_u32', s(s_off), s(s_off), hex(KVP))
    for dt in range(2):
        for i in range(2):
            k.e('v_cvt_pk_bf16_f32', v(v_af + 2 * dt + i), v(v_kv + 4 * dt + 2 * i), v(v_kv + 4 * dt + 2 * i + 1))
        k.e('buffer_store_dwordx2', v(v_af + 2 * dt, 2), v(v_a), s(SWS, 4), s(s_off), mods='offen offset:%d sc1' % (256 * dt))

    c0, c1 = v_af + 4, v_af + 5
    for i in range(14):
        k.e('v_accvgpr_read_b32', v(v_t), a(a_cs + i))
        k.e('v_dot2_f32_bf16', v(c0), v(v_t), s(s_hi10), v(c0) if i else '0')
        k.e('v_dot2_f32_bf16', v(c1), v(v_t), s(s_hi01), v(c1) if i else '0')
    k.e('v_lshlrev_b32', v(v_a), 1, v(v_cso))
    k.e('v_cndmask_b32', v(v_a), v(v_cso), v(v_a), 'vcc')
    k.e('s_lshl_b32', s(s_off), s(s_m), 4)
    k.e('s_add_u32', s(s_off), s(s_off), s(s_rb))
    k.e('s_lshl_b32', s(s_off), s(s_off), 1)
    k.e('s_and_b32', s(s_u), s(s_w), 1)
    k.e('s_add_u32', s(s_off), s(s_off), s(s_u))
    k.e('s_mul_i32', s(s_off), s(s_off), 896)
    k.e('s_lshr_b32', s(s_u), s(s_w), 1)
    k.e('s_mul_i32', s(s_u), s(s_u), 448)
    k.e('s_add_u32', s(s_off), s(s_off), s(s_u))
    k.e('s_add_u32', s(s_off), s(s_off), hex(CSW))
    k.e('buffer_store_dwordx2', v(c0, 2), v(v_a), s(SWS, 4), s(s_off), mods='offen sc1')

    def poll(srd_, soff, imm, lanes, cond):
        Lp, Ld = k.label(), k.label()
        k.e('s_mov_b32', s(s_n), 0)
        k.place(Lp, pad=False)
        cond()
        k.e('s_cbranch_scc1', Ld)
        k.e('s_add_u32', s(s_n), s(s_n), 1)
        k.e('s_cmp_lt_u32', s(s_n), SPIN_MAX)
        k.e('s_cbranch_scc1', Lp)
        k.place(Ld, pad=False)

    def signal(s_cnt, imm, check_init=False):
        k.wait(vm=0)
        raw(k, 's_waitcnt vmcnt(0)')
        k.barrier()
        L1 = k.label()
        k.e('s_cmp_lg_u32', s(s_w), 0)
        k.e('s_cbranch_scc1', L1)
        k.e('s_mov_b64', s(S_E, 2), 'exec')
        k.e('s_mov_b64', 'exec', 1)
        if check_init:
            k.e('s_lshl_b32', s(s_t), s(s_m), 2)
            k.e('s_lshl_b32', s(s_u), s(s_rb), 2)

            def cond():
                raw(k, 'buffer_load_dword %s, off, %s, %s sc1' % (v(v_t), s(SDBG, 4), s(s_t)))
                raw(k, 'buffer_load_dword %s, off, %s, %s offset:64 sc1' % (v(v_u), s(SDBG, 4), s(s_u)))
                raw(k, 's_waitcnt vmcnt(0)')
                k.e('v_and_b32', v(v_t), v(v_t), v(v_u))
                k.e('v_readfirstlane_b32', s(s_off), v(v_t))
                k.e('s_cmp_eq_u32', s(s_off), 1)
            poll(None, None, None, None, cond)
        k.e('v_mov_b32', v(v_t), 1)
        raw(k, 'buffer_atomic_add %s, off, %s, %s offset:%d sc1' % (v(v_t), s(SWS, 4), s(s_cnt), imm))
        k.e('s_mov_b64', 'exec', s(S_E, 2))
        k.place(L1, pad=False)

    def await_(s_cnt, imm, target):
        L1 = k.label()
        k.e('s_cmp_lg_u32', s(s_w), 0)
        k.e('s_cbranch_scc1', L1)
        k.e('s_mov_b64', s(S_E, 2), 'exec')
        k.e('s_mov_b64', 'exec', 1)

        def cond():
            raw(k, 'buffer_load_dword %s, off, %s, %s offset:%d sc1' % (v(v_t), s(SWS, 4), s(s_cnt), imm))
            raw(k, 's_waitcnt vmcnt(0)')
            k.e('v_readfirstlane_b32', s(s_off), v(v_t))
            k.e('s_cmp_ge_u32', s(s_off), target)
        poll(None, None, None, None, cond)
        k.e('s_mov_b64', 'exec', s(S_E, 2))
        k.place(L1, pad=False)
        k.barrier()

    signal(s_c1, 0, check_init=True)
    k.stamp()

    v_q = v_acc + 32
    d = L_WQ - 16384 - abase
    for i in range(4):
        k.e('v_add_u32', v(v_WA + i), d, v(v_WA + i))
    NB = 8

    def rd_q(n):
        ph, i = divmod(n, 4)
        for t in range(2):
            k.e('ds_read_b64_tr_b16', v(v_w + 4 * (n % NB) + 2 * t, 2), v(v_WA + i), mods='offset:%d' % (4096 * ph + 256 * t))
    for n in range(NB):
        rd_q(n)
    for n in range(28):
        wf = v_w + 4 * (n % NB)
        k.e(MF32, v(v_q, 16), v(wf, 4), v(v_x + 4 * n, 4), v(v_q, 16) if n else '0')
        if (n & 3) == 0:
            for dd in range(4):
                k.e('v_dot2_f32_bf16', v(v_csq), v(wf + dd), s(s_ones), v(v_csq))
        if n + NB < 28:
            rd_q(n + NB)
    k.e('s_lshl_b32', s(s_t), s(s_w), 3)
    k.e('s_add_u32', s(s_t), s(s_t), L_CSX)
    k.e('v_lshlrev_b32', v(v_u), 5, v(v_row))
    k.e('v_add_u32', v(v_u), s(s_t), v(v_u))
    cs_publish(v_csq, 2)
    k.barrier()
    k.e('ds_read_b128', v(v_w, 4), v(v_csa), mods='offset:2048')
    k.e(MF32, v(v_q, 16), v(v_w, 4), v(v_mb, 4), v(v_q, 16))
    v_qb = v_w + 8
    scale_pack(v_q, v_qb)
    feature_map(v_qb, None)
    for i in range(4):
        k.e('v_cndmask_b32', v(v_p + 12 + i), v(v_p + i), v(v_p + 12 + i), s(S_HI, 2))
    softmax_pm(k, v_p, v_o1, v_o1 + 8, v_sc, v_mask, s_l2e)
    k.stamp()

    await_(s_c1, 0, 16)
    k.stamp()
    v_pp = v_x
    k.e('v_lshlrev_b32', v(v_a), 4, 'v0')
    k.e('s_lshl_b32', s(s_t), s(s_m), 16)
    k.e('s_add_u32', s(s_t), s(s_t), hex(KVP))
    for r in range(16):
        k.e('s_add_u32', s(s_off), s(s_t), 4096 * r)
        k.e('buffer_load_dwordx4', v(v_pp + 4 * r, 4), v(v_a), s(SWS, 4), s(s_off), mods='offen sc1')
    v_sum = v_acc
    for r in range(16):
        for dd in range(4):
            for h, sel in ((0, s_hi10), (1, s_hi01)):
                k.e('v_dot2_f32_bf16', v(v_sum + 2 * dd + h), v(v_pp + 4 * r + dd), s(sel), v(v_sum + 2 * dd + h) if r else '0')
    for dd in range(4):
        k.e('v_cvt_pk_bf16_f32', v(v_w + dd), v(v_sum + 2 * dd), v(v_sum + 2 * dd + 1))
    k.e('v_add_u32', v(v_a), L_KVF, v(v_a))
    k.e('ds_write_b128', v(v_a), v(v_w, 4))
    k.barrier()
    k.e('v_add_u32', v(v_a), L_KVF, v(v_l16))
    for f in range(4):
        k.e('ds_read_b128', v(v_w + 4 * f, 4), v(v_a), mods='offset:%d' % (1024 * f))
    v_o = v_acc
    for f in range(4):
        k.e(MF32, v(v_o, 16), v(v_w + 4 * f, 4), v(v_o1 + 4 * f, 4), v(v_o, 16) if f else '0')
    k.e('v_mov_b32', v(v_t), v(v_o + 12))
    k.e('v_mov_b32', v(v_rs2), v(v_o + 12))
    k.e('v_permlane32_swap_b32', v(v_t), v(v_rs2))
    bf16_round(k, v_rs2, v_rs2)
    k.e('v_add_f32', v(v_rs2), f32(1e-6), v(v_rs2))
    bf16_round(k, v_rs2, v_rs2)
    k.e('v_rcp_f32', v(v_rs2), v(v_rs2))
    scale_pack(v_o, v_w)
    k.e('v_cndmask_b32', v(v_w + 6), 0, v(v_w + 6), s(S_HI, 2))
    k.e('v_cndmask_b32', v(v_w + 7), 0, v(v_w + 7), s(S_HI, 2))
    k.e('s_lshl_b32', s(s_off), s(s_T), 4)
    k.e('s_add_u32', s(s_off), s(s_off), s(s_m))
    k.e('s_lshl_b32', s(s_off), s(s_off), 11)
    k.e('s_add_u32', s(s_off), s(s_off), hex(OF))
    for u in range(2):
        k.e('buffer_store_dwordx4', v(v_w + 4 * u, 4), v(v_l16), s(SWS, 4), s(s_off), mods='offen offset:%d sc1' % (1024 * u))
    k.stamp()

    signal(s_c2, 0)
    k.stamp()
    L_fin = k.label()

    k.e('s_cmp_ge_u32', s(s_m), 7)
    k.e('s_cselect_b32', s(s_rh), 1, 0)
    k.e('s_mul_i32', s(s_t), s(s_rh), 7)
    k.e('s_sub_u32', s(s_cg), s(s_m), s(s_t))
    k.e('s_lshr_b32', s(s_t), s(s_w), 1)
    k.e('s_lshl_b32', s(s_C), s(s_cg), 1)
    k.e('s_add_u32', s(s_C), s(s_C), s(s_t))
    k.e('s_lshl_b32', s(s_T2), s(s_rb), 2)
    k.e('s_lshl_b32', s(s_t), s(s_rh), 1)
    k.e('s_add_u32', s(s_T2), s(s_T2), s(s_t))
    k.e('s_and_b32', s(s_t), s(s_w), 1)
    k.e('s_add_u32', s(s_T2), s(s_T2), s(s_t))

    v_a, v_b = v_s1, v_s2
    k._vnext = 16
    v_vo8 = k.valloc()
    v_TA = k.valloc(4)
    v_io = k.valloc()
    v_res = k.valloc(8, 4)
    v_free = k._vnext
    k.e('v_lshrrev_b32', v(v_t), 3, v(v_lane))
    k.e('v_mul_u32_u24', v(v_vo8), 896, v(v_t))
    k.e('v_bfe_u32', v(v_t), v(v_lane), 4, 1)
    k.e('v_lshlrev_b32', v(v_t), 2, v(v_t))
    k.e('v_and_b32', v(v_u), 7, v(v_lane))
    k.e('v_xor_b32', v(v_u), v(v_u), v(v_t))
    k.e('v_lshl_add_u32', v(v_vo8), v(v_u), 4, v(v_vo8))
    k.e('v_bfe_u32', v(v_t), v(v_lane), 2, 2)
    k.e('v_lshlrev_b32', v(v_a), 7, v(v_t))
    k.e('v_and_b32', v(v_u), 3, v(v_lane))
    k.e('v_lshl_add_u32', v(v_a), v(v_u), 3, v(v_a))
    k.e('v_bfe_u32', v(v_u), v(v_lane), 4, 1)
    k.e('v_lshl_add_u32', v(v_a), v(v_u), 5, v(v_a))
    k.e('v_bfe_u32', v(v_u), v(v_lane), 3, 1)
    k.e('v_lshlrev_b32', v(v_u), 6, v(v_u))
    k.e('v_xor_b32', v(v_a), v(v_a), v(v_u))
    k.e('s_lshr_b32', s(s_t), s(s_w), 1)
    k.e('s_lshl_b32', s(s_t), s(s_t), 6)
    k.e('v_xor_b32', v(v_TA + 1), s(s_t), v(v_a))
    k.e('v_xor_b32', v(v_TA + 3), 64, v(v_TA + 1))
    k.e('v_lshl_add_u32', v(v_TA), v(v_hi), 9, v(v_TA + 1))
    k.e('v_lshl_add_u32', v(v_TA + 2), v(v_hi), 9, v(v_TA + 3))
    k.e('s_lshl_b32', s(s_t), s(s_T2), 5)
    k.e('v_add_u32', v(v_t), s(s_t), v(v_row))
    k.e('v_mul_u32_u24', v(v_io), 896, v(v_t))
    k.e('s_lshl_b32', s(s_t), s(s_C), 6)
    k.e('v_add_u32', v(v_io), s(s_t), v(v_io))

    v_cp = v_free
    k.e('v_lshlrev_b32', v(v_a), 2, 'v0')
    k.e('v_mov_b32', v(v_b), hex(OOB))
    k.e('v_cmp_gt_u32', 'vcc', 224, 'v0')
    k.e('v_cndmask_b32', v(v_b), v(v_b), v(v_a), 'vcc')
    k.e('s_mul_i32', s(s_t), s(s_m), 32 * 896)
    k.e('s_add_u32', s(s_t), s(s_t), hex(CSW))
    for r in range(32):
        if (r & 3) == 0:
            k.e('s_add_u32', s(s_off), s(s_t), 896 * r)
        k.e('buffer_load_dword', v(v_cp + r), v(v_b), s(SWS, 4), s(s_off), mods='offen offset:%d sc1' % (896 * (r & 3)))

    L_skip2 = k.label()
    k.e('s_cmp_ge_u32', s(s_m), 14)
    k.e('s_cbranch_scc1', L_skip2 + 'a')
    k.e('s_mul_i32', s(s_c), s(s_w), 14336)
    k.e('s_mul_i32', s(s_t), s(s_w), 112 * 896)
    k.e('s_lshl_b32', s(s_u), s(s_cg), 7)
    k.e('s_add_u32', s(s_t), s(s_t), s(s_u))
    snap = list(k.vmq)
    for n in range(14):
        k.e('s_add_u32', 'm0', s(s_c), 1024 * n)
        k.e('s_add_u32', s(s_off), s(s_t), 8 * 896 * n)
        k.e('buffer_load_dwordx4', v(v_vo8), s(SWO, 4), s(s_off), mods='offen lds', tag='wo')
    k.e('v_lshl_add_u32', v(v_t), v(v_hi), 3, v(v_io))
    for g in range(4):
        k.e('buffer_load_dwordx2', v(v_res + 2 * g, 2), v(v_t), s(SX, 4), 0, mods='offen offset:%d' % (16 * g))
    k.place(L_skip2 + 'a', pad=False)
    raw(k, 's_waitcnt vmcnt(0)')
    k.vmq = []
    for r in range(1, 32):
        k.e('v_add_f32', v(v_cp + (r & 1)), v(v_cp + (r & 1)), v(v_cp + r)) if r > 1 else None
    k.e('v_add_f32', v(v_cp), v(v_cp), v(v_cp + 1))
    t0, t1 = v_cp + 2, v_cp + 3
    k.e('v_cvt_pk_bf16_f32', v(t0), v(v_cp), v(v_cp))
    k.e('v_lshlrev_b32', v(v_t), 16, v(t0))
    k.e('v_sub_f32', v(v_cp), v(v_cp), v(v_t))
    k.e('v_cvt_pk_bf16_f32', v(t1), v(v_cp), v(v_cp))
    k.e('v_lshlrev_b32', v(v_t), 16, v(t1))
    k.e('v_sub_f32', v(v_cp), v(v_cp), v(v_t))
    k.e('v_and_b32', v(t0), '0xffff', v(t0))
    k.e('v_or_b32', v(t0), v(t0), v(v_t))
    k.e('v_cvt_pk_bf16_f32', v(t1), v(v_cp), v(v_z))
    k.e('v_lshlrev_b32', v(v_a), 1, v(v_a))
    k.e('v_add_u32', v(v_a), L_CS3, v(v_a))
    k.e('s_and_saveexec_b64', s(S_E, 2), 'vcc')
    k.e('ds_write_b64', v(v_a), v(t0, 2))
    k.e('s_mov_b64', 'exec', s(S_E, 2))

    def reduce_tiles(v_acc4, v_tmp):
        k.barrier()
        for i in range(1, 4):
            k.e('s_xor_b32', s(s_t), s(s_w), i)
            k.e('s_mul_i32', s(s_t), s(s_t), 12288)
            k.e('s_add_u32', s(s_t), s(s_t), L_RED + 4096 * (i - 1))
            k.e('v_add_u32', v(v_t), s(s_t), v(v_l16))
            for g in range(4):
                k.e('ds_write_b128', v(v_t), v(v_acc4 + 16 * i + 4 * g, 4), mods='offset:%d' % (1024 * g))
        k.barrier()
        k.e('s_mul_i32', s(s_t), s(s_w), 12288)
        k.e('s_add_u32', s(s_t), s(s_t), L_RED)
        k.e('v_add_u32', v(v_t), s(s_t), v(v_l16))
        for i in range(3):
            for g in range(4):
                k.e('ds_read_b128', v(v_tmp + 16 * i + 4 * g, 4), v(v_t), mods='offset:%d' % (4096 * i + 1024 * g))
        for i in range(3):
            for r in range(8):
                k.e('v_pk_add_f32', v(v_acc4 + 2 * r, 2), v(v_acc4 + 2 * r, 2), v(v_tmp + 16 * i + 2 * r, 2))

    def add_residual(v_acc4, v_tmp, dst):
        for i in range(8):
            k.e('v_cvt_pk_bf16_f32', v(v_tmp + i), v(v_acc4 + 2 * i), v(v_acc4 + 2 * i + 1))
        for i in range(8):
            k.e('v_lshlrev_b32', v(v_acc4 + 2 * i), 16, v(v_tmp + i))
            k.e('v_and_b32', v(v_acc4 + 2 * i + 1), '0xffff0000', v(v_tmp + i))
        for i in range(8):
            k.e('v_dot2_f32_bf16', v(v_acc4 + 2 * i), v(v_res + i), s(s_hi10), v(v_acc4 + 2 * i))
            k.e('v_dot2_f32_bf16', v(v_acc4 + 2 * i + 1), v(v_res + i), s(s_hi01), v(v_acc4 + 2 * i + 1))
        for i in range(8):
            k.e('v_cvt_pk_bf16_f32', v(dst + i), v(v_acc4 + 2 * i), v(v_acc4 + 2 * i + 1))

    k.e('s_cmp_ge_u32', s(s_m), 14)
    k.e('s_cbranch_scc1', L_skip2)
    v_wf = v_free
    v_of = v_free + 64
    v_ac = v_free + 128
    for i in range(4):
        k.e('v_add_u32', v(v_ac + i), s(s_c), v(v_TA + i))
    for ks in range(8):
        hh, u = ks >> 1, ks & 1
        for a_ in range(2):
            for t_ in range(2):
                clamp = 1 if (u == 1 and t_ == 1) else 0
                k.e('ds_read_b64_tr_b16', v(v_wf + 8 * ks + 4 * a_ + 2 * t_, 2), v(v_ac + 2 * a_ + clamp),
                    mods='offset:%d' % ((28 * hh + 16 * u + 8 * t_) * 128))
    k.wait(lgkm=0)
    await_(s_c2, 0, 16)
    k.stamp()
    for b in range(2):
        if b:
            k.e('s_xor_b32', s(s_t), s(s_T2), 1)
            k.e('s_lshl_b32', s(s_d + b), s(s_t), 15)
        else:
            k.e('s_lshl_b32', s(s_d + b), s(s_T2), 15)
        k.e('s_lshl_b32', s(s_t), s(s_w), 13)
        k.e('s_add_u32', s(s_d + b), s(s_d + b), s(s_t))
        k.e('s_add_u32', s(s_d + b), s(s_d + b), hex(OF))
    for ks in range(8):
        for b in range(2):
            k.e('buffer_load_dwordx4', v(v_of + 8 * ks + 4 * b, 4), v(v_l16), s(SWS, 4), s(s_d + b), mods='offen offset:%d sc1' % (1024 * (ks & 3)))
        if ks == 3:
            for b in range(2):
                k.e('s_add_u32', s(s_d + b), s(s_d + b), 4096)
    for ks in range(8):
        for i in range(4):
            k.e(MF32, v(v_ac + 16 * i, 16), v(v_wf + 8 * ks + 4 * (i >> 1), 4), v(v_of + 8 * ks + 4 * (i & 1), 4), v(v_ac + 16 * i, 16) if ks else '0')
    reduce_tiles(v_ac, v_wf)
    add_residual(v_ac, v_wf, v_res)
    k.e('s_mul_i32', s(s_off), s(s_T2), 28)
    k.e('s_lshl_b32', s(s_t), s(s_C), 1)
    k.e('s_add_u32', s(s_off), s(s_off), s(s_t))
    k.e('s_lshl_b32', s(s_off), s(s_off), 10)
    k.e('s_add_u32', s(s_off), s(s_off), hex(HF))
    for u in range(2):
        k.e('buffer_store_dwordx4', v(v_res + 4 * u, 4), v(v_l16), s(SWS, 4), s(s_off), mods='offen offset:%d sc1' % (1024 * u))
    for i in range(8):
        k.e('v_dot2_f32_bf16', v(v_ac), v(v_res + i), s(s_ones), v(v_ac) if i else '0')
    for i in range(8):
        k.e('v_dot2_f32_bf16', v(v_ac + 1), v(v_res + i), v(v_res + i), v(v_ac + 1) if i else '0')
    swap_op(k, 'v_add_f32', v_ac, v_t)
    swap_op(k, 'v_add_f32', v_ac + 1, v_t)
    k.e('v_lshlrev_b32', v(v_t), 3, v(v_row))
    k.e('v_mov_b32', v(v_u), hex(OOB))
    k.e('v_cndmask_b32', v(v_t), v(v_u), v(v_t), s(S_HI, 2))
    k.e('s_lshl_b32', s(s_off), s(s_C), 14)
    k.e('s_lshl_b32', s(s_t), s(s_T2), 8)
    k.e('s_add_u32', s(s_off), s(s_off), s(s_t))
    k.e('s_add_u32', s(s_off), s(s_off), hex(STATS))
    k.e('buffer_store_dwordx2', v(v_ac, 2), v(v_t), s(SWS, 4), s(s_off), mods='offen sc1')
    signal(s_c2, 4)
    k.place(L_skip2)
    k.vmq, k.lgq = [], []
    raw(k, 's_waitcnt vmcnt(0) lgkmcnt(0)')
    k.e('s_barrier')
    k.stamp()

    v_h = v_free
    v_g = v_free + 112
    k._anext = 0
    a_w = k.aalloc(32, 4)
    a_vo = k.aalloc(8)
    k.e('s_mov_b32', s(s_t), 4682)
    for n in range(7):
        k.e('v_add_u32', v(v_t), 64 * n, v(v_lane))
        k.e('v_mul_u32_u24', v(v_u), s(s_t), v(v_t))
        k.e('v_lshrrev_b32', v(v_u), 16, v(v_u))
        k.e('v_mul_u32_u24', v(v_a), 14, v(v_u))
        k.e('v_sub_u32', v(v_t), v(v_t), v(v_a))
        k.e('v_mul_u32_u24', v(v_u), 3584, v(v_u))
        k.e('v_lshl_add_u32', v(v_u), v(v_t), 4, v(v_u))
        k.e('v_accvgpr_write_b32', a(a_vo + n), v(v_u))
    k.e('s_lshr_b32', s(s_t), s(s_w), 1)
    k.e('s_mul_i32', s(s_e), s(s_t), 14464)
    k.e('s_and_b32', s(s_t), s(s_w), 1)
    k.e('s_mul_i32', s(s_u), s(s_t), 7168)
    k.e('s_add_u32', s(s_e), s(s_e), s(s_u))
    k.e('s_mul_i32', s(s_f), s(s_t), 32 * 3584)
    k.e('s_mul_i32', s(s_u), s(s_m), 224)
    k.e('s_add_u32', s(s_f), s(s_f), s(s_u))

    def w3_dma(c):
        k.e('s_add_u32', s(s_off), s(s_f), 64 * 3584 * c)
        for n in range(7):
            k.e('v_accvgpr_read_b32', v(v_b), a(a_vo + n))
            k.e('s_add_u32', 'm0', s(s_e), (c % 5) * CH + 1024 * n)
            k.e('buffer_load_dwordx4', v(v_b), s(SGU, 4), s(s_off), mods='offen lds', tag='c%d' % c)
    for c in range(5):
        w3_dma(c)
    v_GA = v_TA
    k.e('v_bfe_u32', v(v_t), v(v_lane), 2, 2)
    k.e('v_lshl_add_u32', v(v_t), v(v_hi), 2, v(v_t))
    k.e('v_mul_u32_u24', v(v_a), 224, v(v_t))
    k.e('v_and_b32', v(v_u), 3, v(v_lane))
    k.e('v_lshl_add_u32', v(v_a), v(v_u), 3, v(v_a))
    k.e('v_bfe_u32', v(v_u), v(v_lane), 4, 1)
    k.e('v_mul_u32_u24', v(v_u), 14464, v(v_u))
    k.e('v_add_u32', v(v_GA), v(v_a), v(v_u))
    k.e('v_add_u32', v(v_GA + 1), 2 * CH, v(v_GA))
    k.e('v_add_u32', v(v_GA + 2), 4 * CH, v(v_GA))
    await_(s_c2, 4, 14)
    k.stamp()
    v_st = v_g
    k.e('v_mul_u32_u24', v(v_a), 7 * 16384, v(v_hi))
    k.e('v_lshl_add_u32', v(v_a), v(v_row), 3, v(v_a))
    k.e('s_lshl_b32', s(s_t), s(s_T), 8)
    k.e('s_add_u32', s(s_t), s(s_t), hex(STATS))
    for i in range(7):
        k.e('s_add_u32', s(s_off), s(s_t), 16384 * i)
        k.e('buffer_load_dwordx2', v(v_st + 2 * i, 2), v(v_a), s(SWS, 4), s(s_off), mods='offen sc1')
    k.e('s_mul_i32', s(s_t), s(s_T), 28672)
    k.e('s_add_u32', s(s_t), s(s_t), hex(HF))
    for ks in range(28):
        if (ks & 3) == 0:
            k.e('s_add_u32', s(s_off), s(s_t), 1024 * ks)
        k.e('buffer_load_dwordx4', v(v_h + 4 * ks, 4), v(v_l16), s(SWS, 4), s(s_off), mods='offen offset:%d sc1' % (1024 * (ks & 3)))
    for i in range(1, 7):
        k.e('v_add_f32', v(v_st), v(v_st), v(v_st + 2 * i))
        k.e('v_add_f32', v(v_st + 1), v(v_st + 1), v(v_st + 2 * i + 1))
    swap_op(k, 'v_add_f32', v_st, v_t)
    swap_op(k, 'v_add_f32', v_st + 1, v_t)
    ln_stats(v_st, v_st + 1)
    v_mb3 = 12
    a_mb = k.aalloc(4, 4)
    k.e('v_sub_f32', v(v_nm), 0, v(v_nm))
    k.e('v_cvt_pk_bf16_f32', v(v_t), v(v_nm), v(v_nm))
    k.e('v_cndmask_b32', v(v_t), 0, v(v_t), s(S_HI, 2))
    k.e('v_accvgpr_write_b32', a(a_mb), v(v_t))
    k.e('v_accvgpr_write_b32', a(a_mb + 1), v(v_t))
    k.e('v_accvgpr_write_b32', a(a_mb + 2), 0)
    k.e('v_accvgpr_write_b32', a(a_mb + 3), 0)
    k.e('v_and_b32', v(v_t), 15, v(v_lane))
    k.e('v_bfe_u32', v(v_u), v(v_lane), 4, 1)
    k.e('v_mul_u32_u24', v(v_u), 112, v(v_u))
    k.e('v_add_u32', v(v_t), v(v_t), v(v_u))
    k.e('v_lshlrev_b32', v(v_t), 3, v(v_t))
    k.e('v_add_u32', v(v_t), L_CS3, v(v_t))
    for j in range(7):
        k.e('v_accvgpr_write_b32', a(a_w + 4 * j + 2), 0)
        k.e('v_accvgpr_write_b32', a(a_w + 4 * j + 3), 0)
        k.e('ds_read_b64', a(a_w + 4 * j, 2), v(v_t), mods='offset:%d' % (128 * j))
    for j in range(7):
        k.e(MF32, v(v_g + 16 * j, 16), a(a_w + 4 * j, 4), a(a_mb, 4), '0')
    NR = 8
    seq = [(ks, j) for ks in range(28) for j in range(7)]

    def rd3(n):
        ks, j = seq[n]
        c, i = divmod(ks, 4)
        slot = c % 5
        for t_ in range(2):
            k.e('ds_read_b64_tr_b16', a(a_w + 4 * (n % NR) + 2 * t_, 2), v(v_GA + (slot >> 1)),
                mods='offset:%d' % ((slot & 1) * CH + (16 * i + 8 * t_) * 224 + 32 * j))
    for c in range(7):
        k.wait_tag('c%d' % c)
        k.barrier()
        if 1 <= c <= 2:
            w3_dma(c + 4)
        n0 = 28 * c
        for n in range(n0, n0 + NR):
            rd3(n)
        for n in range(n0, n0 + 28):
            ks, j = seq[n]
            k.e(MF32, v(v_g + 16 * j, 16), a(a_w + 4 * (n % NR), 4), v(v_h + 4 * ks, 4), v(v_g + 16 * j, 16))
            if n + NR < n0 + 28:
                rd3(n + NR)
    k.stamp()
    c0f = -2.0 * 0.7978845608028654 * LOG2E
    v_k = v_h
    k.e('v_mov_b32', v(v_k), v(v_rs))
    k.e('v_mov_b32', v(v_k + 2), f32(c0f))
    k.e('v_mov_b32', v(v_k + 4), f32(c0f * 0.044715))
    k.e('v_mov_b32', v(v_k + 6), '1.0')
    k.e('s_mul_i32', s(s_c), s(s_T), 112)
    k.e('s_mul_i32', s(s_t), s(s_m), 7)
    k.e('s_add_u32', s(s_c), s(s_c), s(s_t))
    k.e('s_lshl_b32', s(s_c), s(s_c), 10)
    k.e('s_add_u32', s(s_c), s(s_c), hex(HH))
    BC = 'op_sel_hi:[1,0]'
    for j in range(7):
        g_ = v_g + 16 * j
        e_ = v_h + 8 + 12 * (j & 1)
        o_ = e_ + 8
        for i in range(8):
            k.e('v_pk_mul_f32', v(g_ + 2 * i, 2), v(g_ + 2 * i, 2), v(v_k, 2), mods=BC)
        for i in range(4):
            k.e('v_pk_mul_f32', v(e_ + 2 * i, 2), v(g_ + 2 * i, 2), v(g_ + 2 * i, 2))
        for i in range(4):
            k.e('v_pk_fma_f32', v(e_ + 2 * i, 2), v(e_ + 2 * i, 2), v(v_k + 4, 2), v(v_k + 2, 2), mods='op_sel_hi:[1,0,0]')
        for i in range(4):
            k.e('v_pk_mul_f32', v(e_ + 2 * i, 2), v(e_ + 2 * i, 2), v(g_ + 2 * i, 2))
        for i in range(8):
            k.e('v_exp_f32', v(e_ + i), v(e_ + i))
        for i in range(4):
            k.e('v_pk_mul_f32', v(g_ + 2 * i, 2), v(g_ + 2 * i, 2), v(g_ + 8 + 2 * i, 2))
        for i in range(4):
            k.e('v_pk_add_f32', v(e_ + 2 * i, 2), v(e_ + 2 * i, 2), v(v_k + 6, 2), mods=BC)
        for i in range(8):
            k.e('v_rcp_f32', v(e_ + i), v(e_ + i))
        for i in range(4):
            k.e('v_pk_mul_f32', v(g_ + 2 * i, 2), v(g_ + 2 * i, 2), v(e_ + 2 * i, 2))
        for i in range(4):
            k.e('v_cvt_pk_bf16_f32', v(o_ + i), v(g_ + 2 * i), v(g_ + 2 * i + 1))
        k.e('s_add_u32', s(s_off), s(s_c), 1024 * j)
        k.e('buffer_store_dwordx4', v(o_, 4), v(v_l16), s(SWS, 4), s(s_off), mods='offen sc1')
    signal(s_c2, 8)
    k.stamp()

    k.e('s_cmp_ge_u32', s(s_m), 14)
    k.e('s_cbranch_scc1', L_fin)
    NS = 20
    k.e('s_mul_i32', s(s_c), s(s_w), 40960)
    k.e('s_mul_i32', s(s_f), s(s_w), 448 * 896)
    k.e('s_lshl_b32', s(s_u), s(s_cg), 7)
    k.e('s_add_u32', s(s_f), s(s_f), s(s_u))

    def w4_dma(ks):
        for h_ in range(2):
            k.e('s_add_u32', 'm0', s(s_c), (ks % NS) * 2048 + 1024 * h_)
            k.e('s_add_u32', s(s_off), s(s_f), (16 * ks + 8 * h_) * 896)
            k.e('buffer_load_dwordx4', v(v_vo8), s(SWD, 4), s(s_off), mods='offen lds', tag='d%d' % ks)
    for ks in range(NS):
        w4_dma(ks)
    k.e('v_bfe_u32', v(v_t), v(v_lane), 2, 2)
    k.e('v_lshlrev_b32', v(v_a), 7, v(v_t))
    k.e('v_and_b32', v(v_u), 3, v(v_lane))
    k.e('v_lshl_add_u32', v(v_a), v(v_u), 3, v(v_a))
    k.e('v_bfe_u32', v(v_u), v(v_lane), 4, 1)
    k.e('v_lshl_add_u32', v(v_a), v(v_u), 5, v(v_a))
    k.e('v_bfe_u32', v(v_u), v(v_lane), 3, 1)
    k.e('v_lshlrev_b32', v(v_u), 6, v(v_u))
    k.e('v_xor_b32', v(v_a), v(v_a), v(v_u))
    k.e('s_lshr_b32', s(s_t), s(s_w), 1)
    k.e('s_lshl_b32', s(s_t), s(s_t), 6)
    k.e('v_xor_b32', v(v_a), s(s_t), v(v_a))
    k.e('v_lshl_add_u32', v(v_a), v(v_hi), 9, v(v_a))
    k.e('v_xor_b32', v(v_b), 64, v(v_a))
    k.e('v_add_u32', v(v_TA), s(s_c), v(v_a))
    k.e('v_add_u32', v(v_TA + 1), s(s_c), v(v_b))
    await_(s_c2, 8, 16)
    k.stamp()
    v_ac = v_free
    v_hf = v_free + 64
    HD = 20
    for b in range(2):
        if b:
            k.e('s_xor_b32', s(s_t), s(s_T2), 1)
            k.e('s_mul_i32', s(s_d + b), s(s_t), 112 * 1024)
        else:
            k.e('s_mul_i32', s(s_d + b), s(s_T2), 112 * 1024)
        k.e('s_mul_i32', s(s_t), s(s_w), 28 * 1024)
        k.e('s_add_u32', s(s_d + b), s(s_d + b), s(s_t))
        k.e('s_add_u32', s(s_d + b), s(s_d + b), hex(HH))

    def hh_ld(ks):
        for b in range(2):
            k.e('buffer_load_dwordx4', v(v_hf + 8 * (ks % HD) + 4 * b, 4), v(v_l16), s(SWS, 4), s(s_d + b), mods='offen offset:%d sc1' % (1024 * (ks & 3)))
        if (ks & 3) == 3:
            for b in range(2):
                k.e('s_add_u32', s(s_d + b), s(s_d + b), 4096)
    for ks in range(HD):
        hh_ld(ks)

    def rd4(ks):
        k.wait_tag('d%d' % ks)
        for a_ in range(2):
            for t_ in range(2):
                k.e('ds_read_b64_tr_b16', a(a_w + 8 * (ks & 3) + 4 * a_ + 2 * t_, 2), v(v_TA + a_),
                    mods='offset:%d' % ((ks % NS) * 2048 + 1024 * t_))
    for ks in range(3):
        rd4(ks)
    for ks in range(28):
        if ks + 3 < 28:
            rd4(ks + 3)
        for i in range(4):
            k.e(MF32, v(v_ac + 16 * i, 16), a(a_w + 8 * (ks & 3) + 4 * (i >> 1), 4), v(v_hf + 8 * (ks % HD) + 4 * (i & 1), 4),
                v(v_ac + 16 * i, 16) if ks else '0')
        if ks + NS < 28:
            w4_dma(ks + NS)
        if ks + HD < 28:
            hh_ld(ks + HD)
    k.stamp()
    reduce_tiles(v_ac, v_hf)
    add_residual(v_ac, v_hf, v_hf + 16)
    v_o = v_hf + 16
    for gp in range(2):
        b = v_o + 4 * gp
        k.e('v_permlane32_swap_b32', v(b), v(b + 2))
        k.e('v_permlane32_swap_b32', v(b + 1), v(b + 3))
    k.e('v_lshl_add_u32', v(v_t), v(v_hi), 4, v(v_io))
    for gp in range(2):
        k.e('buffer_store_dwordx4', v(v_o + 4 * gp, 4), v(v_t), s(SOUT, 4), 0, mods='offen offset:%d' % (32 * gp))
    k.place(L_fin)
    k.vmq, k.lgq = [], []
    k.stamp_store(SWS, DIAGB + 0x20000 * 1, v_t, v_u, s_t)
    k.place(L_end, pad=False)
    k.e('s_endpgm')
    return k


def raw(k, text):
    op = text.split()[0]
    ops = text[len(op):].strip()
    kind = 'salu'
    rd = set()
    for tok in ops.replace(',', ' ').split():
        rd |= regs_of(tok)
    ins = Ins('    ' + text, op, set(), rd, 'vmem' if op.startswith('buffer') else 'salu')
    k._hazard(ins)
    k.ins.append(ins)
    k.hist.append(ins)


def main():
    here = os.path.dirname(os.path.abspath(__file__))
    ref = open(os.path.join(here, '..', 'cdna_kernels', NAME + '.s.ref')).read().splitlines()
    header = [l for l in ref if l.startswith(';') and '@launch' not in l and 'Override launch' not in l and 'grid=ceil' not in l]
    ks = [gen_mega()]
    txt = build_file(header, ks, ks)
    out = sys.argv[1] if len(sys.argv) > 1 else os.path.join(here, 'v2.s')
    open(out, 'w').write(txt)
    for k in ks:
        print(k.name, 'vgpr', k.maxv, 'agpr', k.maxa + 1, 'sgpr', k.maxs, 'ins', len(k.ins), 'lds', k.lds)


if __name__ == '__main__':
    main()
```
